```python
import torch

def _softmax(x, axis=-1):
    return torch.softmax(x, dim=axis)

def _gelu(x):
    return torch.nn.functional.gelu(x, approximate='tanh')

def _silu(x):
    return torch.nn.functional.silu(x)

def _sigmoid(x):
    return torch.sigmoid(x)

def _layernorm(x, axis=-1, eps=1e-05):
    m = x.mean(dim=axis, keepdim=True)
    v = x.var(dim=axis, keepdim=True, unbiased=False)
    return (x - m) / torch.sqrt(v + eps)

def _scatter_add(tgt, idx, src, axis=0):
    return tgt.clone().index_add_(axis, idx, src)

def _segment_sum(src, seg, n):
    out = torch.zeros((n,) + src.shape[1:], dtype=src.dtype)
    return out.index_add_(0, seg, src)

def _pad(x, pw):
    flat = tuple((v for pair in reversed(pw) for v in pair))
    return torch.nn.functional.pad(x, flat)
kernel_name = 'gated_mix__softmax_full_mha__memory_aug_recurrent_mem_tr__prompt'

def setup_inputs():

    _w = lambda a: (lambda t: t.to(torch.bfloat16) if t.is_floating_point() else t)(torch.as_tensor(a))

    def _A_setup():
        B, S, D = (1, 2048, 576)
        return {'x': _w((lambda *s: torch.randn(*s, dtype=torch.bfloat16) * 0.05)(B, S, D)), 'wqkv': _w((lambda *s: torch.randn(*s, dtype=torch.bfloat16) * 0.8)(D, 3 * D)), 'wo': _w((lambda *s: torch.randn(*s, dtype=torch.bfloat16) * 0.05)(D, D))}
    _A_in = _A_setup()

    def _B_setup():
        B, S, Dm = (1, 2048, 576)
        H, Dh = (32, 128)
        M, seg = (8, 32)
        seg = min(seg, S)
        S = S // seg * seg
        return {'x': _w((lambda *s: torch.randn(*s, dtype=torch.bfloat16) * 0.05)(B, S, Dm)), 'mem0': _w((lambda *s: torch.randn(*s, dtype=torch.bfloat16) * 0.8)(B, M, Dm)), 'Wq': _w((lambda *s: torch.randn(*s, dtype=torch.bfloat16) * 3.2)(Dm, H, Dh) * Dm ** (-0.5)), 'Wk': _w((lambda *s: torch.randn(*s, dtype=torch.bfloat16) * 3.2)(Dm, H, Dh) * Dm ** (-0.5)), 'Wv': _w((lambda *s: torch.randn(*s, dtype=torch.bfloat16) * 0.8)(Dm, H, Dh) * Dm ** (-0.5)), 'Wo': _w((lambda *s: torch.randn(*s, dtype=torch.bfloat16) * 0.8)(H, Dh, Dm) * (H * Dh) ** (-0.5)), 'seg_len': seg}
    _B_in = _B_setup()
    return {'A_x': _A_in['x'], 'A_wqkv': _A_in['wqkv'], 'A_wo': _A_in['wo'], 'B_x': _B_in['x'], 'B_mem0': _B_in['mem0'], 'B_Wq': _B_in['Wq'], 'B_Wk': _B_in['Wk'], 'B_Wv': _B_in['Wv'], 'B_Wo': _B_in['Wo'], 'B_seg_len': _B_in['seg_len'], 'gate_w': _w((lambda *s: torch.randn(*s, dtype=torch.bfloat16) * 0.05)(576) * 16.0)}

def reference(A_x, A_wqkv, A_wo, B_x, B_mem0, B_Wq, B_Wk, B_Wv, B_Wo, B_seg_len, gate_w):

    def _A_ref(x, wqkv, wo):
        B, S, D = x.shape
        H = 32
        Dh = D // H
        qkv = (lambda x, *d: x.permute(*d))((x @ wqkv).reshape(B, S, 3, H, Dh), 2, 0, 3, 1, 4)
        q, k, v = (qkv[0], qkv[1], qkv[2])
        scale = Dh ** (-0.5)
        scores = torch.einsum('bhqd,bhkd->bhqk', q, k) * scale
        p = _softmax(scores, axis=-1)
        o = torch.einsum('bhqk,bhkd->bhqd', p, v)
        return (lambda x, *d: x.permute(*d))(o, 0, 2, 1, 3).reshape(B, S, D) @ wo

    def _B_ref(x, mem0, Wq, Wk, Wv, Wo, seg_len):
        B, S, Dm = x.shape
        H, Dh = (Wq.shape[1], Wq.shape[2])
        M = mem0.shape[1]
        scale = Dh ** (-0.5)
        n_seg = S // seg_len
        L = M + seg_len
        idx = torch.arange(L)
        mask = (idx[:, None] < M) | (idx[:, None] >= idx[None, :])
        mem = mem0
        outs = []
        for s in range(n_seg):
            xs = x[:, s * seg_len:(s + 1) * seg_len, :].clone()
            h = torch.concatenate([mem, xs], axis=1)
            q = torch.einsum('btd,dhe->bhte', h, Wq)
            k = torch.einsum('btd,dhe->bhte', h, Wk)
            v = torch.einsum('btd,dhe->bhte', h, Wv)
            scores = torch.einsum('bhqe,bhke->bhqk', q, k) * scale
            scores = torch.where(mask[None, None], scores, -1000000000.0)
            p = _softmax(scores, axis=-1)
            o = torch.einsum('bhqk,bhke->bhqe', p, v)
            o = torch.einsum('bhte,hed->btd', o, Wo)
            mem = o[:, :M, :].clone()
            outs.append(o[:, M:, :])
        return torch.concatenate(outs, axis=1)
    x = A_x
    g = _sigmoid((x * gate_w).sum(-1, keepdims=True))
    a = _A_ref(x, A_wqkv, A_wo)
    b = _B_ref(x, B_mem0, B_Wq, B_Wk, B_Wv, B_Wo, B_seg_len)
    return g * a + (1 - g) * b
```

```python
from prog import *
from layout import *
from gemm import *
LO=(127-30)<<23; RNG=65<<23
def m32(p,d,a,b,c): p("v_mfma_f32_32x32x16_bf16 %s, %s, %s, %s"%(v(d,16),a,b,c))
def m16(p,d,a,b,c=None): p("v_mfma_f32_16x16x32_bf16 %s, %s, %s, %s"%(v(d,4),v(a,4),v(b,4),"0" if c is None else v(c,4)))
def m16k(p,d,a,b,c): p("v_mfma_f32_16x16x16_bf16 %s, %s, %s, %s"%(v(d,4),v(a,2),v(b,2),v(c,4)))
def divmod_const(p,q,r,x,dv,tmp):
    p("s_mul_hi_u32 %s, %s, 0x%x"%(s(q),s(x),(2**32+dv-1)//dv)); p("s_mul_i32 %s, %s, %d"%(s(tmp),s(q),dv)); p("s_sub_u32 %s, %s, %s"%(s(r),s(x),s(tmp)))

def attn_a(p,cfg,Lnext,abort):
    st=cfg.get("st"," sc1")
    sH_,sBLK,sRND,sFL,sCNT,sSLOW=56,57,58,59,60,61
    sP=62; sQ=64
    divmod_const(p,sH_,sBLK,sIDX,7,sT[0])
    p("s_lshl_b32 %s, %s, 2"%(s(sBLK),s(sBLK))); p("s_add_u32 %s, %s, %s"%(s(sBLK),s(sBLK),s(sW)))
    p("s_lshr_b32 %s, %s, 3"%(s(sFL),s(sH_))); p("s_add_u32 %s, %s, %d"%(s(sFL),s(sFL),F_A))
    wait_flag(p,sFL,24,abort,2)
    L16,KA,K1A,VA,QN=1,4,5,6,7
    p("v_lshlrev_b32 %s, 4, v0"%v(L16))
    p("s_mul_i32 %s, %s, %d"%(s(sT[0]),s(sH_),AKV_H)); p("s_mul_i32 %s, %s, %d"%(s(sT[1]),s(sW),37*1024)); p("s_add_u32 %s, %s, %s"%(s(sT[0]),s(sT[0]),s(sT[1])))
    p("s_add_u32 %s, %s, 0x%x"%(s(sT[0]),s(sT[0]),WS_AKV)); add64s(p,sP,sWS,sT[0])
    p("s_barrier")
    for i in range(37):
        if i%4==0:
            p("s_add_u32 m0, %s, %d"%(s(sT[1]),1024*i))
            if i: add64(p,sP,sP,4096)
            p("s_nop 0")
        p("global_load_lds_dwordx4 %s, %s offset:%d sc1"%(v(L16),s(sP,2),1024*(i%4)),"kv")
    p("s_lshl_b32 %s, %s, 6"%(s(sT[0]),s(sW))); p("v_add_u32 v2, %s, v0"%s(sT[0])); p("v_mul_u32_u24 v2, 304, v2"); p("v_add_u32 v2, %d, v2"%(AV0+288))
    for i in range(4): p("v_mov_b32 %s, 0x3f803f80"%v(8+i))
    p("v_and_b32 %s, 31, v0"%v(QN)); p("v_lshlrev_b32 %s, 2, %s"%(v(QN),v(QN)))
    p.wait(vm="all"); p("s_barrier")
    p("ds_write_b128 v2, v[8:11]","o"); p.wait(lg="all"); p("s_barrier")
    Q0,Q1,K0,K1,V0,V1=8,12,[16,32],[20,36],[24,40],[28,44]
    SA,SB,PP,O,NM=48,64,80,96,112
    for i in range(1,4): p("v_mov_b32 %s, 0"%v(Q1+i)); p("v_mov_b32 %s, 0"%v(K1[0]+i)); p("v_mov_b32 %s, 0"%v(K1[1]+i))
    p("s_mov_b32 %s, 0"%s(sRND))
    Lr,Lsk,Lrun,Lp,Lok=p.newlabel("AR"),p.newlabel("AS"),p.newlabel("AU"),p.newlabel("AL"),p.newlabel("AO")
    p.label(Lr,reset=True)
    p("s_cmp_ge_u32 %s, 64"%s(sBLK)); p("s_cbranch_scc1 %s"%Lsk)
    p("s_mul_i32 %s, %s, %d"%(s(sT[0]),s(sH_),AQ_H)); p("s_mul_i32 %s, %s, 1152"%(s(sT[1]),s(sBLK))); p("s_add_u32 %s, %s, %s"%(s(sT[0]),s(sT[0]),s(sT[1])))
    p("s_add_u32 %s, %s, 0x%x"%(s(sT[0]),s(sT[0]),WS_AQ)); add64s(p,sQ,sWS,sT[0])
    p("global_load_dwordx4 %s, %s, %s sc1"%(v(Q0,4),v(L16),s(sQ,2)),"q"); p("global_load_dword %s, %s, %s offset:1024 sc1"%(v(Q1),v(QN),s(sQ,2)),"q")
    for i in range(0,16,2): p("v_mov_b64 %s, 0"%v(NM+i,2))
    p("s_mov_b32 %s, 0"%s(sSLOW))
    p.wait(vm="q")
    p("s_mov_b64 exec, 0xffffffff"); p("s_not_b64 exec, exec"); p("v_mov_b32 %s, 0"%v(Q1)); p("s_mov_b64 exec, -1")
    def addr():
        p("v_mov_b32 %s, %s"%(v(KA),v(L16))); p("v_add_u32 %s, %d, %s"%(v(K1A),AK1,v(QN)))
        p("v_and_b32 v2, 31, v0"); p("v_min_u32 v2, 18, v2"); p("v_lshrrev_b32 v3, 5, v0"); p("v_mul_u32_u24 v3, 304, v3")
        p("v_lshl_add_u32 v2, v2, 4, v3"); p("v_add_u32 %s, %d, v2"%(v(VA),AV0))
    def rk(b,t): p("ds_read_b128 %s, %s offset:%d"%(v(K0[b],4),v(KA),1024*t),"k%d"%b); p("ds_read_b32 %s, %s offset:%d"%(v(K1[b]),v(K1A),128*t),"k%d"%b)
    def rv(b,t): p("ds_read_b128 %s, %s offset:%d"%(v(V0[b],4),v(VA),AVT*t),"v%d"%b); p("ds_read_b128 %s, %s offset:%d"%(v(V1[b],4),v(VA),AVT*t+608),"v%d"%b)
    p.label(Lrun,reset=True)
    addr()
    for i in range(0,16,2): p("v_mov_b64 %s, 0"%v(O+i,2))
    rk(0,0); rk(1,1); rv(0,0)
    p.wait(lg="k0"); m32(p,SA,v(K0[0],4),v(Q0,4),v(NM,16)); m32(p,SA,v(K1[0],4),v(Q1,4),v(SA,16))
    rk(0,2)
    p("s_mov_b32 %s, 32"%s(sCNT)); p("s_nop 7")
    E=lambda r: p("v_exp_f32 %s, %s"%(v(r),v(r)))
    C=lambda d,a: p("v_cvt_pk_bf16_f32 %s, %s, %s"%(v(d),v(a),v(a+1)))
    def tile(cur,nxt,b,t):
        nb=1-b
        p.wait(lg="k%d"%nb); m32(p,nxt,v(K0[nb],4),v(Q0,4),v(NM,16)); rv(nb,t+1)
        for i in range(4): E(cur+i)
        m32(p,nxt,v(K1[nb],4),v(Q1,4),v(nxt,16)); rk(nb,t+3)
        for i in range(4,8): E(cur+i)
        for i in range(4): C(PP+i,cur+2*i)
        E(cur+8)
        p.wait(lg="v%d"%b); m32(p,O,v(V0[b],4),v(PP,4),v(O,16))
        for i in range(9,16): E(cur+i)
        for i in range(4,8): C(PP+i,cur+2*i)
        p("s_nop 0")
        m32(p,O,v(V1[b],4),v(PP+4,4),v(O,16))
    keep=len(p.items)
    for rep in range(2):
        if rep==1: del p.items[keep:]; p.raw(".p2align 6"); p.label(Lp)
        tile(SA,SB,0,0); tile(SB,SA,1,1)
        p("v_add_u32 %s, 2048, %s"%(v(KA),v(KA))); p("v_add_u32 %s, 256, %s"%(v(K1A),v(K1A))); p("v_add_u32 %s, %d, %s"%(v(VA),2*AVT,v(VA)))
        p("s_sub_u32 %s, %s, 1"%(s(sCNT),s(sCNT))); p("s_cmp_lg_u32 %s, 0"%s(sCNT)); p("s_cbranch_scc1 %s"%Lp)
    p.wait(lg="all"); p("s_nop 15")
    p("v_mov_b32 v2, %s"%v(O+10)); p("v_mov_b32 v3, %s"%v(O+10)); p("v_permlane32_swap_b32 v2, v3"); p("s_nop 1")
    p("v_subrev_u32 v3, 0x%x, v2"%LO); p("v_cmp_le_u32 vcc, 0x%x, v3"%RNG)
    p("s_cmp_lg_u32 %s, 0"%s(sSLOW)); p("s_cbranch_scc1 %s"%Lok)
    p("s_cbranch_vccz %s"%Lok)
    Lm=p.newlabel("AM")
    addr(); p("v_mov_b32 v2, 0xff800000"); p("s_mov_b32 %s, 64"%s(sCNT))
    p.label(Lm,reset=True)
    rk(0,0); p.wait(lg="all")
    m32(p,SA,v(K0[0],4),v(Q0,4),"0"); m32(p,SA,v(K1[0],4),v(Q1,4),v(SA,16))
    for i in range(0,16,2): p("v_max3_f32 v2, v2, %s, %s"%(v(SA+i),v(SA+i+1)))
    p("v_add_u32 %s, 1024, %s"%(v(KA),v(KA))); p("v_add_u32 %s, 128, %s"%(v(K1A),v(K1A)))
    p("s_sub_u32 %s, %s, 1"%(s(sCNT),s(sCNT))); p("s_cmp_lg_u32 %s, 0"%s(sCNT)); p("s_cbranch_scc1 %s"%Lm)
    p("v_mov_b32 v3, v2"); p("v_permlane32_swap_b32 v2, v3"); p("s_nop 1"); p("v_max_f32 v2, v2, v3")
    for i in range(16): p("v_sub_f32 %s, 0, v2"%v(NM+i))
    p("s_mov_b32 %s, 1"%s(sSLOW)); p("s_branch %s"%Lrun)
    p.label(Lok,reset=True)
    p("v_rcp_f32 v2, v2")
    for i in range(10): p("v_mul_f32 %s, %s, v2"%(v(O+i),v(O+i)))
    for i in range(5): C(O+i,O+2*i)
    p("s_mul_i32 %s, %s, %d"%(s(sT[0]),s(sBLK),OA_M)); p("s_add_u32 %s, %s, 0x%x"%(s(sT[0]),s(sT[0]),WS_OA)); add64s(p,sQ,sWS,sT[0])
    p("s_lshl_b32 %s, %s, 10"%(s(sT[1]),s(sH_))); p("v_add_u32 v2, %s, %s"%(s(sT[1]),v(L16)))
    p("global_store_dwordx4 v2, %s, %s%s"%(v(O,4),s(sQ,2),st),"st")
    p("s_lshr_b32 %s, %s, 2"%(s(sT[1]),s(sH_))); p("s_lshl_b32 %s, %s, 9"%(s(sT[1]),s(sT[1]))); p("s_and_b32 %s, %s, 3"%(s(sT[2]),s(sH_))); p("s_lshl_b32 %s, %s, 2"%(s(sT[2]),s(sT[2])))
    p("s_add_u32 %s, %s, %s"%(s(sT[1]),s(sT[1]),s(sT[2]))); p("s_add_u32 %s, %s, 32768"%(s(sT[1]),s(sT[1])))
    p("v_add_u32 v3, %s, %s"%(s(sT[1]),v(L16)))
    p("s_mov_b64 exec, 0xffffffff"); p("global_store_dword v3, %s, %s%s"%(v(O+4),s(sQ,2),st),"st"); p("s_mov_b64 exec, -1")
    p.label(Lsk,reset=True)
    p("s_waitcnt vmcnt(0)"); p("s_barrier")
    Ls2=p.newlabel("AG")
    p("s_cmp_lg_u32 %s, 0"%s(sW)); p("s_cbranch_scc1 %s"%Ls2)
    p("v_add_u32 v2, %s, v0"%s(sBLK)); p("v_cmp_gt_u32 vcc, 64, v2"); p("s_and_b64 vcc, vcc, 15"); p("s_cbranch_vccz %s"%Ls2)
    p("v_lshlrev_b32 v2, 7, v2"); p("v_add_u32 v2, 0x%x, v2"%(WS_FLAG+128*F_OA)); p("v_mov_b32 v3, 1")
    p("s_mov_b64 exec, vcc"); p("global_atomic_add v2, v3, %s"%s(sWS,2)); p("s_mov_b64 exec, -1")
    p.label(Ls2,reset=True); p.vm=[]
    p("s_add_u32 %s, %s, 28"%(s(sBLK),s(sBLK))); p("s_add_u32 %s, %s, 1"%(s(sRND),s(sRND)))
    p("s_cmp_lt_u32 %s, 3"%s(sRND)); p("s_cbranch_scc1 %s"%Lr)
    p("s_branch %s"%Lnext)

def attn_b(p,cfg,sJ,nwg,Lnext,abort):
    st=cfg.get("st"," sc1")
    sH_,sS,sFL=56,57,59; sP=62; sQ=64; sM_=66; MK=[68,70,72,74]; sC=76
    p("s_and_b32 %s, %s, 7"%(s(sH_),s(sJ))); p("s_lshl_b32 %s, %s, 2"%(s(sH_),s(sH_))); p("s_add_u32 %s, %s, %s"%(s(sH_),s(sH_),s(sW)))
    p("s_lshr_b32 %s, %s, 3"%(s(sS),s(sJ)))
    p("s_mov_b32 %s, 0x%x"%(s(sC),f2u(CB)))
    L16,L4,OAD=1,4,5
    p("v_lshlrev_b32 %s, 4, v0"%v(L16)); p("v_lshlrev_b32 %s, 2, v0"%v(L4))
    p("v_lshrrev_b32 v2, 4, v0"); p("v_and_b32 v3, 15, v0")
    p("v_lshrrev_b32 v6, 1, v2"); p("v_lshlrev_b32 v6, 10, v6"); p("v_and_b32 v7, 1, v2"); p("v_lshl_add_u32 v7, v7, 5, v3"); p("v_lshl_add_u32 %s, v7, 4, v6"%v(OAD))
    p("v_lshlrev_b32 v2, 2, v2")
    for j in range(4): p("v_add_u32 v6, %d, v2"%j); p("v_cmp_le_u32 %s, v6, v3"%s(MK[j],2))
    Q,K,V,KM,VM=8,40,72,104,120
    S00,S01,S11,SM0,SM1=136,140,144,148,152
    E_=156
    P0,P1,PM0,PM1,ONES,NINF=176,180,184,186,188,192
    L0_,L1_=196,200
    O=204
    for i in range(4): p("v_mov_b32 %s, 0x3f803f80"%v(ONES+i))
    for i in range(8): p("v_mov_b32 %s, 0"%v(VM+2*i+1))
    p("v_mov_b32 %s, 0xff800000"%v(NINF))
    for r in (P0+2,P0+3,PM0+1,PM1+1): p("v_mov_b32 %s, 0"%v(r))
    Lt=p.newlabel("BT")
    p.label(Lt,reset=True)
    p("s_cmp_ge_u32 %s, 64"%s(sS)); p("s_cbranch_scc1 %s"%Lnext)
    p("s_lshr_b32 %s, %s, 3"%(s(sFL),s(sS))); wait_flag(p,sFL,32,abort,2)
    p("s_add_u32 %s, %s, %d"%(s(sFL),s(sFL),F_Q)); wait_flag(p,sFL,16,abort,2)
    p("s_mul_i32 %s, %s, %d"%(s(sT[0]),s(sH_),KV_H)); p("s_lshl_b32 %s, %s, 14"%(s(sT[1]),s(sS))); p("s_add_u32 %s, %s, %s"%(s(sT[0]),s(sT[0]),s(sT[1])))
    p("s_add_u32 %s, %s, 0x%x"%(s(sT[0]),s(sT[0]),WS_KV+4096)); add64s(p,sP,sWS,sT[0])
    p("s_lshl_b32 %s, %s, 19"%(s(sT[0]),s(sH_))); p("s_lshl_b32 %s, %s, 13"%(s(sT[1]),s(sS))); p("s_add_u32 %s, %s, %s"%(s(sT[2]),s(sT[0]),s(sT[1])))
    p("s_add_u32 %s, %s, 0x%x"%(s(sT[0]),s(sT[2]),WS_QX+4096)); add64s(p,sQ,sWS,sT[0])
    p("s_add_u32 %s, %s, 0x%x"%(s(sT[0]),s(sT[2]),WS_KVM+4096)); add64s(p,sM_,sWS,sT[0])
    for f in range(8):
        p("global_load_dwordx4 %s, %s, %s offset:%d sc1"%(v(Q+4*f,4),v(L16),s(sQ,2),1024*f-4096),"q")
        p("global_load_dwordx4 %s, %s, %s offset:%d sc1"%(v(K+4*f,4),v(L16),s(sP,2),1024*f-4096),"q")
    add64(p,sP,sP,8192)
    for f in range(8): p("global_load_dwordx4 %s, %s, %s offset:%d sc1"%(v(V+4*f,4),v(L16),s(sP,2),1024*f-4096),"v")
    p.wait(vm="q")
    for ks in range(4):
        m16(p,S00,K+4*ks,Q+4*ks,None if ks==0 else S00); m16(p,S01,K+4*ks,Q+16+4*ks,None if ks==0 else S01); m16(p,S11,K+16+4*ks,Q+16+4*ks,None if ks==0 else S11)
    for j in range(4):
        p("v_cndmask_b32 %s, %s, %s, %s"%(v(S00+j),v(NINF),v(S00+j),s(MK[j],2))); p("v_cndmask_b32 %s, %s, %s, %s"%(v(S11+j),v(NINF),v(S11+j),s(MK[j],2)))
    p("s_add_u32 %s, %s, %d"%(s(sFL),s(sS),F_KM)); wait_flag(p,sFL,32,abort,2); p.vm=[]
    for ks in range(4): p("global_load_dwordx4 %s, %s, %s offset:%d sc1"%(v(KM+4*ks,4),v(L16),s(sM_,2),1024*ks-4096),"km")
    for a in range(8): p("global_load_dword %s, %s, %s offset:%d sc1"%(v(VM+2*a),v(L4),s(sM_,2),256*a),"vm")
    C=lambda d,a: p("v_cvt_pk_bf16_f32 %s, %s, %s"%(v(d),v(a),v(a+1)))
    src=[S00+i for i in range(4)]+[S01+i for i in range(4)]+[S11+i for i in range(4)]+[SM0,SM0+1,SM1,SM1+1]
    for i in range(12): p("v_exp_f32 %s, %s"%(v(E_+i),v(src[i])))
    p.wait(vm="km")
    for ks in range(4):
        m16(p,SM0,KM+4*ks,Q+4*ks,None if ks==0 else SM0); m16(p,SM1,KM+4*ks,Q+16+4*ks,None if ks==0 else SM1)
    for r in (SM0,SM0+1,SM1,SM1+1): p("v_mul_f32 %s, %s, %s"%(v(r),s(sC),v(r)))
    for i in range(12,16): p("v_exp_f32 %s, %s"%(v(E_+i),v(src[i])))
    Lpv,Lok=p.newlabel("BP"),p.newlabel("BO")
    p("s_mov_b32 %s, 0"%s(sT[5]))
    p.label(Lpv)
    C(P0,E_); C(P0+1,E_+2); C(P1,E_+4); C(P1+1,E_+6); C(P1+2,E_+8); C(P1+3,E_+10); C(PM0,E_+12); C(PM1,E_+14)
    m16(p,L0_,ONES,P0); m16(p,L1_,ONES,P1); m16k(p,L0_,ONES,PM0,L0_); m16k(p,L1_,ONES,PM1,L1_)
    p("v_subrev_u32 v2, 0x%x, %s"%(LO,v(L0_))); p("v_subrev_u32 v3, 0x%x, %s"%(LO,v(L1_))); p("v_max_u32 v2, v2, v3"); p("v_cmp_le_u32 vcc, 0x%x, v2"%RNG)
    p("s_cmp_lg_u32 %s, 0"%s(sT[5])); p("s_cbranch_scc1 %s"%Lok); p("s_cbranch_vccz %s"%Lok)
    snap=p.snapshot()
    for (m,regs) in ((2,src[0:4]+src[12:14]),(6,src[4:12]+src[14:16])):
        p("v_max_f32 %s, %s, %s"%(v(m),v(regs[0]),v(regs[1])))
        for i in range(2,len(regs),2): p("v_max3_f32 %s, %s, %s, %s"%(v(m),v(m),v(regs[i]),v(regs[i+1])))
        for op in ("v_permlane16_swap_b32","v_permlane32_swap_b32"):
            p("v_mov_b32 %s, %s"%(v(m+1),v(m))); p("%s %s, %s"%(op,v(m),v(m+1))); p("s_nop 1"); p("v_max_f32 %s, %s, %s"%(v(m),v(m),v(m+1)))
    for i in range(16):
        m=2 if (i<4 or i in (12,13)) else 6
        p("v_sub_f32 %s, %s, %s"%(v(E_+i),v(src[i]),v(m))); p("v_exp_f32 %s, %s"%(v(E_+i),v(E_+i)))
    p("s_mov_b32 %s, 1"%s(sT[5])); p("s_nop 1"); p("s_branch %s"%Lpv)
    p.label(Lok); p.restore(snap); p.hist=[]
    p("v_rcp_f32 v2, %s"%v(L0_)); p("v_rcp_f32 v3, %s"%v(L1_))
    p("s_mul_i32 %s, %s, %d"%(s(sT[0]),s(sS),OA_M)); p("s_lshl_b32 %s, %s, 13"%(s(sT[1]),s(sH_))); p("s_add_u32 %s, %s, %s"%(s(sT[0]),s(sT[0]),s(sT[1])))
    p("s_add_u32 %s, %s, 0x%x"%(s(sT[0]),s(sT[0]),WS_OA+36*1024+4096)); add64s(p,sQ,sWS,sT[0])
    p.wait(vm="all")
    for a2 in range(4):
        for tq,(P,PM,R) in enumerate(((P0,PM0,2),(P1,PM1,3))):
            for x in range(2): m16(p,O+8*tq+4*x,V+4*(2*a2+x),P)
        for tq,(P,PM,R) in enumerate(((P0,PM0,2),(P1,PM1,3))):
            for x in range(2): m16k(p,O+8*tq+4*x,VM+2*(2*a2+x),PM,O+8*tq+4*x)
        for tq,(P,PM,R) in enumerate(((P0,PM0,2),(P1,PM1,3))):
            d=O+8*tq
            for i in range(8): p("v_mul_f32 %s, %s, %s"%(v(d+i),v(d+i),v(R)))
            for i in range(4): C(E_+4*tq+8*(a2%2)+i,d+2*i)
            p("global_store_dwordx4 %s, %s, %s offset:%d%s"%(v(OAD),v(E_+4*tq+8*(a2%2),4),s(sQ,2),2048*a2-4096+256*tq,st),"st")
    p("s_add_u32 %s, %s, %d"%(s(sFL),s(sS),F_OB))
    signal(p,sFL,st); p.vm=[]
    p("s_add_u32 %s, %s, %d"%(s(sS),s(sS),nwg//8)); p("s_branch %s"%Lt)

def final_proj(p,cfg,sJ,nteam,Lnext,abort):
    sS,sNT,sFL,sPAR=56,57,59,60; sP=62; sQ=64; sK=66
    divmod_const(p,sS,sNT,sJ,18,sT[0])
    L16,DB,DA,DL,RD,XA,OUTA,LW,LR=1,4,5,6,7,8,9,10,11
    p("v_lshlrev_b32 %s, 4, v0"%v(L16))
    p("v_lshrrev_b32 v2, 5, v0"); p("v_bfe_u32 v3, v0, 4, 1"); p("v_bfe_u32 v12, v0, 2, 2"); p("v_and_b32 v13, 3, v0"); p("v_lshlrev_b32 v13, 4, v13")
    p("s_lshl_b32 %s, %s, 6"%(s(sT[0]),s(sNT))); p("v_add_u32 v13, %s, v13"%s(sT[0]))
    p("v_lshl_add_u32 v14, v2, 2, v12")
    p("v_lshl_add_u32 v15, v3, 4, v14"); p("v_mov_b32 v16, 1152"); p("v_mad_u32_u24 %s, v15, v16, v13"%v(DB))
    p("v_lshl_add_u32 v15, v3, 3, v14"); p("v_mad_u32_u24 %s, v15, v16, v13"%v(DA))
    p("v_bfe_u32 v14, v0, 3, 2"); p("v_lshl_add_u32 v14, v2, 2, v14"); p("v_mul_u32_u24 v14, 18, v14"); p("v_bfe_u32 v15, v0, 2, 1"); p("v_add_u32 v14, v14, v15")
    p("v_mad_u32_u24 %s, v14, v16, v13"%v(DL))
    p("v_lshl_add_u32 v14, v2, 3, v12"); p("v_lshlrev_b32 v14, 6, v14"); p("v_lshl_add_u32 v14, v3, 5, v14"); p("v_and_b32 v15, 3, v0"); p("v_lshl_add_u32 v14, v15, 3, v14")
    p("s_lshl_b32 %s, %s, 15"%(s(sT[4]),s(sW))); p("v_add_u32 %s, %s, v14"%(v(RD),s(sT[4])))
    p("v_and_b32 v14, 31, v0"); p("v_mul_u32_u24 v14, 1152, v14"); p("s_mul_i32 %s, %s, 288"%(s(sT[1]),s(sW))); p("v_lshl_add_u32 v15, v2, 4, v14"); p("v_add_u32 %s, %s, v15"%(v(XA),s(sT[1])))
    p("s_lshl_b32 %s, %s, 4"%(s(sT[1]),s(sW))); p("s_add_u32 %s, %s, %s"%(s(sT[1]),s(sT[1]),s(sT[0]))); p("v_lshl_add_u32 v15, v2, 3, v14"); p("v_add_u32 %s, %s, v15"%(v(OUTA),s(sT[1])))
    GW=184
    p("s_mul_i32 %s, %s, 288"%(s(sT[1]),s(sW))); p("v_lshlrev_b32 v15, 4, v2"); p("v_add_u32 v15, %s, v15"%s(sT[1]))
    for i in range(9): p("global_load_dwordx4 %s, v15, %s offset:%d"%(v(GW+4*i,4),s(sGW,2),32*i),"gw")
    p("s_lshl_b32 %s, %s, 12"%(s(sT[1]),s(sW))); p("v_add_u32 %s, %s, %s"%(v(LW),s(sT[1]),v(L16)))
    p("s_lshl_b32 %s, %s, 10"%(s(sT[1]),s(sW))); p("v_add_u32 %s, %s, %s"%(v(LR),s(sT[1]),v(L16)))
    def wreg(i): return acc(4*i,4) if i<64 else v(220+4*(i-64),4)
    def wreg2(i,h): return acc(4*i+2*h,2) if i<64 else v(220+4*(i-64)+2*h,2)
    p("s_barrier")
    Lw0,Lgo=p.newlabel("FW"),p.newlabel("FG")
    p("s_cmp_eq_u32 %s, 0"%s(sW)); p("s_cbranch_scc1 %s"%Lw0)
    snap=p.snapshot()
    def loadw(w0):
        if not w0: p("s_mul_i32 %s, %s, 73"%(s(sK),s(sW))); p("s_sub_u32 %s, %s, 36"%(s(sK),s(sK)))
        for c0 in range(0,73,32):
            n=min(32,73-c0)
            for i in range(c0,c0+n):
                if w0:
                    if i<32: base,off,vo=sWOA,18*i*1152,DA
                    elif i<36: base,off,vo=sWOA,(18*8*(i-32)+16)*1152,DL
                    else: k=i-36; base,off,vo=sWO,(32*(k>>1)+8*(k&1))*1152,DB
                    add64(p,sP,base,off)
                else:
                    vo=DB
                    p("s_lshr_b32 %s, %s, 1"%(s(sT[0]),s(sK))); p("s_lshl_b32 %s, %s, 2"%(s(sT[0]),s(sT[0]))); p("s_and_b32 %s, %s, 1"%(s(sT[1]),s(sK)))
                    p("s_add_u32 %s, %s, %s"%(s(sT[0]),s(sT[0]),s(sT[1]))); p("s_mul_i32 %s, %s, %d"%(s(sT[0]),s(sT[0]),8*1152)); add64s(p,sP,sWO,sT[0])
                    p("s_add_u32 %s, %s, 1"%(s(sK),s(sK)))
                p("s_add_u32 m0, %s, %d"%(s(sT[4]),1024*(i-c0))); p("s_nop 0")
                p("global_load_lds_dwordx4 %s, %s"%(v(vo),s(sP,2)),"w%d"%i)
            for i in range(c0,c0+n):
                p.wait(vm="w%d"%i)
                for h in range(2): p("ds_read_b64_tr_b16 %s, %s offset:%d"%(wreg2(i,h),v(RD),1024*(i-c0)+256*h),"t")
            p.wait(lg="all")
    loadw(False); p("s_branch %s"%Lgo)
    p.label(Lw0,reset=True); p.restore(snap); p.hist=[]
    loadw(True)
    p.label(Lgo,reset=True); p.vm=[]; p.lg=[]
    p("s_barrier")
    p("s_mov_b32 %s, 0"%s(sPAR))
    AB,AA,AG=12,28,44; XB=60; RB=96; NB=22
    Lt,Lv0,Lred=p.newlabel("FT"),p.newlabel("FV"),p.newlabel("FR")
    p.label(Lt,reset=True)
    p("s_cmp_ge_u32 %s, 64"%s(sS)); p("s_cbranch_scc1 %s"%Lnext)
    p("s_mul_i32 %s, %s, %d"%(s(sT[2]),s(sS),32*1152)); add64s(p,sQ,sX,sT[2])
    for i in range(9): p("global_load_dwordx4 %s, %s, %s offset:%d"%(v(XB+4*i,4),v(XA),s(sQ,2),32*i),"x")
    add64s(p,sQ,sOUT,sT[2])
    p("s_add_u32 %s, %s, %d"%(s(sFL),s(sS),F_OA)); wait_flag(p,sFL,32,abort,2); p.vm=[]
    for i in range(9): m32(p,AG,v(GW+4*i,4),v(XB+4*i,4),"0" if i==0 else v(AG,16))
    p("s_mul_i32 %s, %s, %d"%(s(sT[2]),s(sS),OA_M)); p("s_mul_i32 %s, %s, %d"%(s(sT[3]),s(sW),73*1024)); p("s_add_u32 %s, %s, %s"%(s(sT[2]),s(sT[2]),s(sT[3])))
    p("s_add_u32 %s, %s, 0x%x"%(s(sT[2]),s(sT[2]),WS_OA+4096)); add64s(p,sP,sWS,sT[2])
    p("s_add_u32 %s, %s, %d"%(s(sFL),s(sS),F_OB)); wait_flag(p,sFL,8,abort,2); p.vm=[]
    p("s_cmp_eq_u32 %s, 0"%s(sW)); p("s_cbranch_scc1 %s"%Lv0)
    def stream(w0):
        def ld(i):
            if i and i%8==0: add64(p,sP,sP,8192)
            p("global_load_dwordx4 %s, %s, %s offset:%d sc1"%(v(RB+4*(i%NB),4),v(L16),s(sP,2),1024*(i%8)-4096),"a%d"%i)
        for i in range(NB): ld(i)
        for i in range(73):
            p.wait(vm="a%d"%i)
            d=AA if (w0 and i<36) else AB
            first=(i==0) or (w0 and i==36)
            m32(p,d,wreg(i),v(RB+4*(i%NB),4),"0" if first else v(d,16))
            if i+NB<73: ld(i+NB)
        p("s_nop 15")
        if w0:
            for q in range(4): p("ds_write_b128 %s, %s offset:%d"%(v(LW),v(AA+4*q,4),16384+1024*q),"r")
    stream(False); p("s_branch %s"%Lred)
    p.label(Lv0,reset=True); p.vm=[]; p.lg=[]
    stream(True)
    p.label(Lred,reset=True); p.lg=[]
    for q in range(4): p("ds_write_b128 %s, %s offset:%d"%(v(LW),v(AB+4*q,4),1024*q),"r")
    p("ds_write_b32 %s, %s offset:20480"%(v(LR),v(AG)),"r")
    p("s_waitcnt lgkmcnt(0)"); p("s_barrier")
    T=60
    for w_ in range(5): p("ds_read_b128 %s, %s offset:%d"%(v(T+4*w_,4),v(LR),4096*w_),"r")
    p("v_and_b32 v2, 0x83ff, %s"%v(LW)) if False else p("v_subrev_u32 v2, %s, %s"%(s(sT[1]),v(LR))) if False else None
    p("s_lshl_b32 %s, %s, 10"%(s(sT[1]),s(sW))); p("v_subrev_u32 v2, %s, %s"%(s(sT[1]),v(LR)))
    for w_ in range(4): p("ds_read_b32 %s, v2 offset:%d"%(v(T+20+w_),20480+1024*w_),"r")
    p.wait(lg="all")
    p("v_add_f32 v2, %s, %s"%(v(T+20),v(T+21))); p("v_add_f32 v3, %s, %s"%(v(T+22),v(T+23))); p("v_add_f32 v2, v2, v3")
    p("v_mul_f32 v2, 0x%x, v2"%f2u(-math.log2(math.e))); p("v_exp_f32 v2, v2"); p("v_add_f32 v2, 1.0, v2"); p("v_rcp_f32 v2, v2")
    for i in range(4):
        p("v_add_f32 %s, %s, %s"%(v(T+i),v(T+i),v(T+4+i))); p("v_add_f32 %s, %s, %s"%(v(T+8+i),v(T+8+i),v(T+12+i))); p("v_add_f32 %s, %s, %s"%(v(T+i),v(T+i),v(T+8+i)))
        p("v_sub_f32 %s, %s, %s"%(v(T+16+i),v(T+16+i),v(T+i))); p("v_fma_f32 %s, v2, %s, %s"%(v(T+i),v(T+16+i),v(T+i)))
    p("v_cvt_pk_bf16_f32 %s, %s, %s"%(v(T),v(T),v(T+1))); p("v_cvt_pk_bf16_f32 %s, %s, %s"%(v(T+1),v(T+2),v(T+3)))
    p("global_store_dwordx2 %s, %s, %s"%(v(OUTA),v(T,2),s(sQ,2)),"out")
    p("v_xor_b32 %s, 0x8000, %s"%(v(LW),v(LW))); p("v_xor_b32 %s, 0x8000, %s"%(v(LR),v(LR)))
    p("s_add_u32 %s, %s, %d"%(s(sS),s(sS),nteam)); p("s_branch %s"%Lt)
```

```python
from prog import *
from layout import *

sWQ,sWK,sWV,sWO,sMEM0,sWS,sDBG = 4,6,8,10,12,14,16
sH,sW = 18,19
AGP=[(20,22,24),(68,70,72)]
sCA,sCR=76,77
sRSS0,sRSS1,sRSL0,sRSL1 = 28,30,32,34
sKX,sKVM,sSTR = 36,38,40
sSTEP,sBUD,sC,sLO,sRNG = 42,43,44,45,46
sT0,sT1,sT2,sT3 = 48,49,50,51
sTA = 52
sTB = 54
sAGOFF = 56
sONE=57
sFKM=26; sNEXT=27
sSTAMP = 58
sSTP   = 60
L0,IDX,XW,XR,L2,RSST,RSLD,AGST,PERM,L1,PM,ZERO = 0,1,2,3,4,5,6,7,8,9,10,11
RING=[12,16,20,24]; ACC=28; AQ0,AQ1,AK0,AK1=28,32,36,40; B0=44; B1=52; STR=60; XD=76
VACC=B0
RQ=72
WBASE=80
KXB=131072; VXB=KXB+16384; XB=VXB+8192; OB=XB+4096; C8B=OB+2048; SELB=C8B+1024; JUNKB=SELB+256
LDS_TOTAL=163840
assert JUNKB+256<=LDS_TOTAL

LDS_BLOCKS=[('k',0),('k',2),('k',4),('k',6),('k',8),('o',2,1),('o',4,1),('o',6,1)]
STR_BLOCKS=[('v',6)]
ALL_BLOCKS=[(m,k) for m in 'qkv' for k in range(9)]+[('o',t,ks) for t in (0,2,4,6) for ks in (0,1)]+[('o8',)]
REG_BLOCKS=[b for b in ALL_BLOCKS if b not in LDS_BLOCKS and b not in STR_BLOCKS]
assert len(REG_BLOCKS)==27
ORDER=STR_BLOCKS+REG_BLOCKS+LDS_BLOCKS
REGBASE={}
for n,b in enumerate(REG_BLOCKS): REGBASE[b]=WBASE+16*n
assert WBASE+16*27==512
LDSREG={b:i for i,b in enumerate(LDS_BLOCKS)}
def region(n): return (n+2)%10
for i,b in enumerate(LDS_BLOCKS): assert region(ORDER.index(b))==i

def lds_addr(off):
    if off<65536: return L0,off
    if off<131072: return L1,off-65536
    return L2,off-131072

def opnd_reg(b,j): return REGBASE[b]+8*j
def o_opnd(tau,ks):
    if tau==8: return (('o8',),ks)
    return (('o',tau&~1,ks),tau&1)

def smf(p,d,a,b): p("v_smfmac_f32_16x16x64_bf16 %s, %s, %s, %s"%(v(d,4),v(a,4),ur(b,8),v(IDX)))
def mf(p,d,a,b,c=None): p("v_mfma_f32_16x16x32_bf16 %s, %s, %s, %s"%(v(d,4),v(a,4),v(b,4),"0" if c is None else v(c,4)))
def mf16(p,d,a,b,c): p("v_mfma_f32_16x16x16_bf16 %s, %s, %s, %s"%(v(d,4),v(a,2),v(b,2),"0" if c is None else v(c,4)))
def zero(p,r,n):
    for i in range(0,n,2): p("v_mov_b64 %s, 0"%v(r+i,2))

def lds_opnd_read(p,w,b,j,dst,tag):
    base=LDSREG[b]*16384+w*4096+j*2048
    for hf in range(2):
        r,im=lds_addr(base+hf*1024)
        p("ds_read_b128 %s, %s offset:%d"%(v(dst+4*hf,4),v(r),im),tag)

def add64(p,dst,src,imm):
    p("s_add_u32 %s, %s, 0x%x"%(s(dst),s(src),imm)); p("s_addc_u32 %s, %s, 0"%(s(dst+1),s(src+1)))
def add64s(p,dst,src,sreg):
    p("s_add_u32 %s, %s, %s"%(s(dst),s(src),s(sreg))); p("s_addc_u32 %s, %s, 0"%(s(dst+1),s(src+1)))

def prologue(p,cfg):
    T=list(range(12,44))
    NEG1=XD
    lane,g,c,r4,c4=T[0],T[1],T[2],T[3],T[4]
    p("v_and_b32 %s, 63, v0"%v(lane))
    p("v_lshrrev_b32 %s, 4, %s"%(v(g),v(lane)))
    p("v_and_b32 %s, 15, %s"%(v(c),v(lane)))
    p("v_lshrrev_b32 %s, 2, %s"%(v(r4),v(c)))
    p("v_and_b32 %s, 3, %s"%(v(c4),v(c)))
    p("v_lshlrev_b32 %s, 4, %s"%(v(L0),v(lane)))
    p("v_add_u32 %s, 0x10000, %s"%(v(L1),v(L0)))
    p("v_add_u32 %s, 0x20000, %s"%(v(L2),v(L0)))
    t0,t1,t2,t3=T[5],T[6],T[7],T[8]
    DA,DB,DO,DO8=T[9],T[10],T[11],T[12]
    RA,RB=T[13],T[14]
    sg=T[15]
    p("s_and_b32 %s, %s, 1"%(s(sT0),s(sW))); p("s_lshl_b32 %s, %s, 2"%(s(sT0),s(sT0)))
    p("v_add_u32 %s, %s, %s"%(v(t0),s(sT0),v(g)))
    p("v_lshrrev_b32 %s, 1, %s"%(v(t1),v(c)))
    p("v_xor_b32 %s, %s, %s"%(v(sg),v(t0),v(t1)))
    p("v_and_b32 %s, 1, %s"%(v(t1),v(c)))
    p("v_lshlrev_b32 %s, 4, %s"%(v(t1),v(t1)))
    p("v_lshl_add_u32 %s, %s, 5, %s"%(v(t2),v(sg),v(t1)))
    p("v_lshrrev_b32 %s, 1, %s"%(v(t0),v(g)))
    p("v_and_b32 %s, 1, %s"%(v(t3),v(g)))
    p("v_lshlrev_b32 %s, 16, %s"%(v(DA),v(t0)))
    p("v_add_u32 %s, %s, %s"%(v(DA),v(DA),v(t2)))
    p("v_lshl_add_u32 %s, %s, 19, %s"%(v(DB),v(t3),v(DA)))
    p("v_lshl_add_u32 %s, %s, 13, %s"%(v(DA),v(t3),v(DA)))
    p("v_lshl_add_u32 %s, %s, 6, %s"%(v(t0),v(t0),v(t3)))
    p("v_mul_u32_u24 %s, 1152, %s"%(v(t0),v(t0)))
    p("v_add_u32 %s, %s, %s"%(v(DO),v(t0),v(t2)))
    p("v_lshrrev_b32 %s, 2, %s"%(v(t3),v(sg)))
    p("v_mul_u32_u24 %s, %d, %s"%(v(t3),32*1152,v(t3)))
    p("v_and_b32 %s, 3, %s"%(v(DO8),v(sg)))
    p("v_lshl_add_u32 %s, %s, 5, %s"%(v(DO8),v(DO8),v(t1)))
    p("v_add3_u32 %s, %s, %s, %s"%(v(DO8),v(DO8),v(t0),v(t3)))
    sA,sB,sO=62,63,64
    p("s_lshr_b32 %s, %s, 1"%(s(sT0),s(sW))); p("s_and_b32 %s, %s, 1"%(s(sT1),s(sW)))
    p("s_lshl_b32 %s, %s, 4"%(s(sT2),s(sT0)))
    p("s_lshl_b32 %s, %s, 2"%(s(sT3),s(sT1))); p("s_add_u32 %s, %s, %s"%(s(sA),s(sT2),s(sT3)))
    p("s_lshl_b32 %s, %s, 1"%(s(sT3),s(sT1))); p("s_add_u32 %s, %s, %s"%(s(sB),s(sT2),s(sT3)))
    p("s_lshl_b32 %s, %s, 13"%(s(sA),s(sA))); p("s_lshl_b32 %s, %s, 13"%(s(sB),s(sB)))
    p("s_lshl_b32 %s, %s, 8"%(s(sT2),s(sH)))
    p("s_add_u32 %s, %s, %s"%(s(sA),s(sA),s(sT2))); p("s_add_u32 %s, %s, %s"%(s(sB),s(sB),s(sT2)))
    p("s_lshl_b32 %s, %s, 4"%(s(sT2),s(sT1))); p("s_lshl_b32 %s, %s, 2"%(s(sT3),s(sT0))); p("s_add_u32 %s, %s, %s"%(s(sO),s(sT2),s(sT3)))
    p("s_mul_i32 %s, %s, 1152"%(s(sO),s(sO)))
    p("s_mul_i32 %s, %s, 147456"%(s(sT2),s(sH))); p("s_add_u32 %s, %s, %s"%(s(sO),s(sO),s(sT2)))
    sMW=65
    p("s_lshl_b32 %s, %s, 10"%(s(sMW),s(sW)))
    def dma_block(n):
        b=ORDER[n]; reg=region(n)
        for y in range(4):
            if b[0] in 'qkv':
                base={'q':sWQ,'k':sWK,'v':sWV}[b[0]]
                sgm,u=divmod(b[1],3); c_,a_,b_=STAGES[sgm]
                if u==0: d=64*c_+32*(y//2)+2*(y%2); so=sA; vo=DA
                else: d=64*a_+32*(y//2)+4*(u-1)+(y%2); so=sB; vo=DB
                imm=d*8192
            elif b[0]=='o':
                base=sWO; so=sO; vo=DO; imm=(32*b[2]+8*(y//2)+2*(y%2))*1152+128*b[1]
            else:
                base=sWO; so=sO; vo=DO8; imm=(8*(y//2)+2*(y%2))*1152+128*8
            p("s_add_u32 %s, %s, 0x%x"%(s(sT0),s(so),imm))
            p("s_add_u32 %s, %s, %s"%(s(sTA),s(base),s(sT0))); p("s_addc_u32 %s, %s, 0"%(s(sTA+1),s(base+1)))
            p("s_add_u32 m0, %s, 0x%x"%(s(sMW),reg*16384+y*4096))
            p("global_load_lds_dwordx4 %s, %s%s"%(v(vo),s(sTA,2),cfg.get("wmod","")),"blk%d"%n)
    NFL=10
    for n in range(NFL): dma_block(n)
    RQ0,RQ1,RO0,RO1=T[16],T[17],T[18],T[19]
    p("v_lshl_add_u32 %s, %s, 2, %s"%(v(t0),v(g),v(r4)))
    p("v_and_b32 %s, 7, %s"%(v(t1),v(t0)))
    p("v_lshlrev_b32 %s, 8, %s"%(v(t0),v(t0)))
    p("v_lshl_add_u32 %s, %s, 3, %s"%(v(t0),v(c4),v(t0)))
    p("s_lshl_b32 %s, %s, 1"%(s(sT0),s(sW)))
    p("v_xor_b32 %s, %s, %s"%(v(t2),s(sT0),v(t1)))
    p("v_lshl_add_u32 %s, %s, 5, %s"%(v(RQ0),v(t2),v(t0)))
    p("v_xor_b32 %s, 32, %s"%(v(RQ1),v(RQ0)))
    p("v_xor_b32 %s, %s, %s"%(v(t2),s(sW),v(t1)))
    p("v_lshl_add_u32 %s, %s, 5, %s"%(v(RO0),v(t2),v(t0)))
    p("v_xor_b32 %s, 128, %s"%(v(RO1),v(RO0)))
    p("v_and_b32 %s, 2, %s"%(v(t0),v(c)))
    p("v_cmp_eq_u32 vcc, 0, %s"%v(t0))
    p("v_mov_b32 %s, 0xeeee"%v(t1)); p("v_mov_b32 %s, 0x4444"%v(t2))
    p("v_cndmask_b32 %s, %s, %s, vcc"%(v(IDX),v(t1),v(t2)))
    p("v_xor_b32 %s, %s, %s"%(v(t0),v(g),v(r4)))
    p("v_lshlrev_b32 %s, 3, %s"%(v(t0),v(t0)))
    p("v_lshl_add_u32 %s, %s, 5, %s"%(v(t0),v(c),v(t0)))
    p("s_add_u32 %s, %s, %d"%(s(sT0),s(sMW),XB))
    p("v_add_u32 %s, %s, %s"%(v(XW),s(sT0),v(t0)))
    p("v_xor_b32 %s, %s, %s"%(v(t0),v(g),v(c4)))
    p("v_lshlrev_b32 %s, 3, %s"%(v(t0),v(t0)))
    p("v_lshl_add_u32 %s, %s, 2, %s"%(v(t1),v(g),v(r4)))
    p("v_lshl_add_u32 %s, %s, 5, %s"%(v(t0),v(t1),v(t0)))
    p("v_add_u32 %s, %d, %s"%(v(XR),XB,v(t0)))
    p("v_lshrrev_b32 %s, 3, %s"%(v(t0),v(lane)))
    p("s_lshl_b32 %s, %s, 3"%(s(sT0),s(sW)))
    p("v_add_u32 %s, %s, %s"%(v(t0),s(sT0),v(t0)))
    p("v_mul_u32_u24 %s, 9216, %s"%(v(t0),v(t0)))
    p("v_and_b32 %s, 7, %s"%(v(t1),v(lane)))
    p("v_mul_u32_u24 %s, 12, %s"%(v(t2),v(t1)))
    p("s_mul_i32 %s, %s, 96"%(s(sT0),s(sH)))
    p("v_add3_u32 %s, %s, %s, %s"%(v(RSST),v(t0),v(t2),s(sT0)))
    p("v_mul_u32_u24 %s, 12, %s"%(v(RSLD),v(lane)))
    p("s_lshr_b32 %s, %s, 3"%(s(sT0),s(sH))); p("s_lshl_b32 %s, %s, 8"%(s(sT0),s(sT0)))
    p("s_and_b32 %s, %s, 7"%(s(sT1),s(sH))); p("s_lshl_b32 %s, %s, 5"%(s(sT1),s(sT1)))
    p("s_add_u32 %s, %s, %s"%(s(sT0),s(sT0),s(sT1)))
    p("s_mul_i32 %s, %s, 3072"%(s(sT1),s(sW))); p("s_add_u32 %s, %s, %s"%(s(sT0),s(sT0),s(sT1)))
    p("v_and_b32 %s, 1, %s"%(v(t0),v(t1))); p("v_lshlrev_b32 %s, 4, %s"%(v(t0),v(t0)))
    p("v_lshrrev_b32 %s, 1, %s"%(v(t2),v(t1))); p("v_lshl_add_u32 %s, %s, 2, %s"%(v(t0),v(t2),v(t0)))
    p("v_lshrrev_b32 %s, 2, %s"%(v(t2),v(t1))); p("v_lshlrev_b32 %s, 10, %s"%(v(t2),v(t2)))
    p("v_and_b32 %s, 3, %s"%(v(t3),v(t1))); p("v_lshl_add_u32 %s, %s, 2, %s"%(v(t2),v(t3),v(t2)))
    p("v_lshrrev_b32 %s, 1, %s"%(v(t3),v(g))); p("v_lshl_add_u32 %s, %s, 4, %s"%(v(t2),v(t3),v(t2)))
    p("v_add_u32 %s, 1024, %s"%(v(t2),v(t2)))
    p("v_cmp_eq_u32 vcc, 0, %s"%v(g))
    p("v_cndmask_b32 %s, %s, %s, vcc"%(v(t0),v(t2),v(t0)))
    p("v_add_u32 %s, %s, %s"%(v(AGST),s(sT0),v(t0)))
    p("v_and_b32 %s, 1, %s"%(v(t0),v(lane))); p("v_cmp_eq_u32 vcc, 0, %s"%v(t0))
    p("v_mov_b32 %s, 0x03020706"%v(t1)); p("v_mov_b32 %s, 0x05040100"%v(t2))
    p("v_cndmask_b32 %s, %s, %s, vcc"%(v(PERM),v(t1),v(t2)))
    p("v_mov_b32 %s, 0"%v(ZERO)); p("v_mov_b32 %s, 0"%v(PM))
    for i in range(4): p("v_mov_b32 %s, -1"%v(NEG1+i))
    import struct, math
    p("s_mov_b32 %s, 0x%08x"%(s(sC),struct.unpack("<I",struct.pack("<f",math.log2(math.e)/math.sqrt(128.0)))[0]))
    p("s_mov_b32 %s, 0x%08x"%(s(sLO),(127-30)<<23)); p("s_mov_b32 %s, 0x%08x"%(s(sRNG),(65)<<23))
    p("s_mov_b32 %s, 0x3f803f80"%s(sONE)); p("s_mov_b32 %s, 0x%x"%(s(sFKM),WS_FLAG+128*(F_KM-1))); p("s_mov_b32 %s, %d"%(s(sNEXT),cfg.get("next0",63)))
    p("s_mov_b32 %s, 0"%s(sSTEP)); p("s_mov_b32 %s, 0x%x"%(s(sBUD),cfg.get("budget",1<<18)))
    add64(p,sRSS0,sWS,WS_RS+3072); add64(p,sRSS1,sWS,WS_RS+0x80000+3072)
    p("s_mul_i32 %s, %s, 9216"%(s(sT0),s(sH))); p("s_mul_i32 %s, %s, 3072"%(s(sT1),s(sW))); p("s_add_u32 %s, %s, %s"%(s(sT0),s(sT0),s(sT1)))
    p("s_add_u32 %s, %s, 0x%x"%(s(sT0),s(sT0),WS_RS))
    add64s(p,sRSL0,sWS,sT0); add64(p,sRSL1,sRSL0,0x80000)
    p("s_lshl_b32 %s, %s, 15"%(s(sT0),s(sH))); p("s_lshl_b32 %s, %s, 13"%(s(sT1),s(sW))); p("s_add_u32 %s, %s, %s"%(s(sT0),s(sT0),s(sT1)))
    p("s_add_u32 %s, %s, 0x%x"%(s(sT0),s(sT0),WS_STR+4096)); add64s(p,sSTR,sWS,sT0)
    p("s_mul_i32 %s, %s, %d"%(s(sT0),s(sH),KVM_H))
    p("s_add_u32 %s, %s, 0x%x"%(s(sT0),s(sT0),WS_KVM+4096)); add64s(p,sKVM,sWS,sT0)
    p("s_mul_i32 %s, %s, %d"%(s(sT0),s(sH),KV_H)); p("s_lshl_b32 %s, %s, 11"%(s(sT1),s(sW))); p("s_add_u32 %s, %s, %s"%(s(sT0),s(sT0),s(sT1)))
    p("s_add_u32 %s, %s, 0x%x"%(s(sT0),s(sT0),WS_KV)); add64s(p,sKX,sWS,sT0)
    st=" sc1"
    for b_ in (sRSL0,sRSL1):
        for k in range(3): p("global_store_dwordx4 %s, %s, %s offset:%d%s"%(v(L0),v(NEG1,4),s(b_,2),1024*k,st),"init")
    for k in range(4):
        add64(p,sTA,sWS,WS_AG+16384*k)
        p("global_store_dword %s, %s, %s%s"%(v(AGST),v(NEG1),s(sTA,2),st),"init")
    TMP=[44,60]
    pend=None
    for n in range(len(ORDER)):
        b=ORDER[n]
        p.wait(vm="blk%d"%n, lg="all")
        if n==10:
            assert not any(e[0]=="init" for e in p.vm)
            p("s_mov_b64 exec, 1"); p("v_mov_b32 %s, 1"%v(t0)); p("v_mov_b32 %s, 4"%v(t1))
            p("global_atomic_add %s, %s, %s"%(v(t1),v(t0),s(sDBG,2)),"cnt"); p("s_mov_b64 exec, -1")
        p("s_barrier")
        if n>=1 and n+9<len(ORDER): dma_block(n+9)
        if pend is not None:
            pb,tm=pend; base=LDSREG[pb]*16384
            for q in range(4):
                r_,im=lds_addr(base+q*1024)
                p("v_add_u32 %s, %s, %s"%(v(t0),s(66),v(r_))) if q==0 else None
                p("ds_write_b128 %s, %s offset:%d"%(v(t0),v(tm+4*q,4),im),"wb")
            pend=None
        if n==0: p("s_lshl_b32 %s, %s, 12"%(s(66),s(sW)))
        if n==28:
            cfg["hook_first_kv"](p)
            for q in range(2):
                p("s_add_u32 m0, %s, 0x%x"%(s(67),KXB)) if q==0 else None
                p("global_load_lds_dwordx4 %s, %s offset:%d sc1"%(v(L0),s(sKX,2),1024*q),"kv0")
            add64(p,sTA,sKX,8192)
            p("s_add_u32 m0, %s, 0x%x"%(s(67),VXB))
            for q in range(2):
                p("global_load_lds_dwordx4 %s, %s offset:%d sc1"%(v(L0),s(sTA,2),1024*q),"kv0")
            add64(p,sKX,sKX,KV_S)
            p("v_min_u32 %s, 2, %s"%(v(t0),v(r4)))
            p("v_mov_b32 %s, 0x3f80"%v(t1)); p("v_mov_b32 %s, 0x3f800000"%v(t2))
            p("v_cmp_eq_u32 vcc, 0, %s"%v(c4)); p("v_cndmask_b32 %s, 0, %s, vcc"%(v(t1),v(t1)))
            p("v_cmp_eq_u32 vcc, 1, %s"%v(c4)); p("v_cndmask_b32 %s, %s, %s, vcc"%(v(t1),v(t1),v(t2)))
            for u in range(3):
                p("v_cmp_eq_u32 vcc, %d, %s"%(u,v(t0))); p("v_cndmask_b32 %s, 0, %s, vcc"%(v(XD+u),v(t1)))
            p("v_mov_b32 %s, 0"%v(XD+3))
            p("v_lshlrev_b32 %s, 4, %s"%(v(t0),v(c))); p("v_add_u32 %s, %d, %s"%(v(t0),SELB,v(t0)))
            p("ds_write_b128 %s, %s"%(v(t0),v(XD,4)),"sel")
        if n==0: p("s_lshl_b32 %s, %s, 11"%(s(67),s(sW)))
        base=region(n)*16384
        rd=(RQ0,RQ1) if b[0] in 'qkv' else (RO0,RO1)
        hi=base>=65536
        dst = REGBASE[b] if b in REGBASE else TMP[n%2]
        for j in range(2):
            a_=rd[j]
            if hi:
                p("v_add_u32 %s, 0x%x, %s"%(v(t2+j),base&~0xffff,v(a_))); a_=t2+j
            for y in range(4):
                p("ds_read_b64_tr_b16 %s, %s offset:%d"%(ur(dst+8*j+2*y,2),v(a_),(base&0xffff)+4096*y),"tr")
        if b in STR_BLOCKS:
            p.wait(lg="all")
            o=2*STR_BLOCKS.index(b)
            for q in range(4):
                p("global_store_dwordx4 %s, %s, %s offset:%d"%(v(L0),v(dst+4*q,4),s(sSTR,2),o*2048+q*1024-4096),"strst")
        if b in LDS_BLOCKS: pend=(b,dst)
    p.wait(lg="all"); p("s_barrier")
    pb,tm=pend; base=LDSREG[pb]*16384
    for q in range(4):
        r_,im=lds_addr(base+q*1024)
        p("v_add_u32 %s, %s, %s"%(v(t0),s(66),v(r_))) if q==0 else None
        p("ds_write_b128 %s, %s offset:%d"%(v(t0),v(tm+4*q,4),im),"wb")
    ma=PM
    p("v_and_b32 %s, 1, %s"%(v(t0),v(c))); p("v_lshl_add_u32 %s, %s, 1, %s"%(v(t0),v(r4),v(t0)))
    p("v_mul_u32_u24 %s, 1152, %s"%(v(t0),v(t0)))
    p("v_and_b32 %s, 2, %s"%(v(t1),v(c))); p("v_lshlrev_b32 %s, 3, %s"%(v(t1),v(t1)))
    p("v_lshl_add_u32 %s, %s, 5, %s"%(v(t1),v(g),v(t1)))
    p("v_add_u32 %s, %s, %s"%(v(ma),v(t0),v(t1)))
    p.wait(lg="all")
    MM=12; RAW=48
    for sg_,(c_,a_,b_) in enumerate(STAGES):
        p("global_load_dwordx4 %s, %s, %s offset:%d"%(v(MM+12*sg_,4),v(ma),s(sMEM0,2),128*c_),"m0")
        p("global_load_dwordx4 %s, %s, %s offset:%d"%(v(RAW+8*sg_,4),v(ma),s(sMEM0,2),128*a_),"m0")
        p("global_load_dwordx4 %s, %s, %s offset:%d"%(v(RAW+4+8*sg_,4),v(ma),s(sMEM0,2),128*b_),"m0")
    p("s_mov_b32 %s, 0x05040100"%s(sT0)); p("s_mov_b32 %s, 0x07060302"%s(sT1))
    p.wait(vm="all")
    for sg_ in range(3):
        A,B=RAW+8*sg_,RAW+4+8*sg_
        for x in range(2):
            for i in range(4):
                p("v_perm_b32 %s, %s, %s, %s"%(v(MM+12*sg_+4+4*x+i),v(B+2*x+i//2),v(A+2*x+i//2),s(sT1 if i%2 else sT0)))
    p("s_lshl_b32 %s, %s, 2"%(s(sT0),s(sH))); p("s_add_u32 %s, %s, %s"%(s(sT0),s(sT0),s(sW))); p("s_lshl_b32 %s, %s, 14"%(s(sT0),s(sT0)))
    p("s_add_u32 %s, %s, 0x%x"%(s(sT0),s(sT0),WS_M0)); add64s(p,AGP[1][1],sWS,sT0); add64(p,sTA,AGP[1][1],4096); add64(p,sTB,AGP[1][1],8192)
    p("s_mul_i32 %s, %s, 3072"%(s(sT0),s(sW))); add64s(p,AGP[1][0],AGP[1][1],sT0)
    for k in range(8): p("global_store_dwordx4 %s, %s, %s offset:%d"%(v(L0),v(MM+4*k,4),s(sTA,2),1024*k-4096),"m0s")
    p("global_store_dwordx4 %s, %s, %s"%(v(L0),v(MM+32,4),s(sTB,2)),"m0s")
    for k in range(9):
        r_,im=lds_addr(stg_addr(1,k)); p("ds_write_b128 %s, %s offset:%d"%(v(r_),v(MM+4*k,4),im),"m0w")
    p.wait(lg="all")
    Lp=p.newlabel("MB"); Lto=cfg["abort"]
    p("v_mov_b32 %s, 0"%v(PM))
    p.label(Lp)
    p("global_load_dwordx4 %s, %s, %s sc1"%(v(XD,4),v(PM),s(sDBG,2)),"mb"); p.wait(vm="mb")
    p("v_readfirstlane_b32 %s, %s"%(s(sT0),v(XD+1))); p("v_readfirstlane_b32 %s, %s"%(s(sT1),v(XD+2)))
    p("s_sub_u32 %s, %s, 1"%(s(sBUD),s(sBUD))); p("s_cbranch_scc1 %s"%Lto)
    p("s_cmp_lt_u32 %s, 128"%s(sT0)); p("s_cbranch_scc1 %s"%Lp)
    p("s_barrier")
    add64(p,AGP[1][2],sWS,0)
    if cfg.get("endstamp"): p("s_memtime s[94:95]"); p("s_memrealtime s[90:91]"); p("s_waitcnt lgkmcnt(0)"); p("s_mov_b32 %s, 0x40000"%s(sBUD))
    p("s_mov_b32 %s, 0"%s(sAGOFF)); p("s_mov_b32 %s, 0"%s(sCA)); p("s_mov_b32 %s, 0"%s(sCR))
    p("s_mul_i32 %s, %s, 3072"%(s(sT0),s(sW))); ag_ptrs(p,0,(sT0,))
    names=cfg["entries"]
    Lslow=p.newlabel("SLOWSEL")
    p("s_cmp_lg_u32 %s, 0"%s(sT1)); p("s_cbranch_scc1 %s"%Lslow)
    for w in range(3):
        p("s_cmp_eq_u32 %s, %d"%(s(sW),w)); p("s_cbranch_scc1 %s"%names[(0,w)])
    p("s_branch %s"%names[(0,3)])
    p.label(Lslow)
    for w in range(3):
        p("s_cmp_eq_u32 %s, %d"%(s(sW),w)); p("s_cbranch_scc1 %s"%names[(1,w)])
    p("s_branch %s"%names[(1,3)])

def ag_ptrs(p,par,w3072):
    sAGL,sAGS,sAGR=AGP[par]
    p("s_add_u32 %s, %s, 0xc000"%(s(sT3),s(sAGOFF))); p("s_and_b32 %s, %s, 0xffff"%(s(sT3),s(sT3)))
    add64s(p,sAGR,sWS,sT3)
    p("s_add_u32 %s, %s, 0x4000"%(s(sAGOFF),s(sAGOFF))); p("s_and_b32 %s, %s, 0xffff"%(s(sAGOFF),s(sAGOFF)))
    add64s(p,sAGS,sWS,sAGOFF)
    if isinstance(w3072,int): add64(p,sAGL,sAGS,w3072)
    else: add64s(p,sAGL,sAGS,w3072[0])

def stg_addr(par,k):
    return KXB+8192*par+1024*k if k<8 else C8B

def ag_dma(p,par,sg_,tag="ag"):
    sAGL=AGP[par][0]
    p("s_mov_b32 m0, 0x%x"%stg_addr(par,3*sg_))
    for u in range(3):
        if 3*sg_+u==8: p("s_mov_b32 m0, 0x%x"%(C8B-2048))
        p("global_load_lds_dwordx4 %s, %s offset:%d sc1"%(v(L0),s(sAGL,2),1024*u),tag)

def mread(p,par,k,dst,tag=None):
    r_,im=lds_addr(stg_addr(par,k))
    p("ds_read_b128 %s, %s offset:%d"%(v(dst,4),v(r_),im),tag or "m%d"%k)

def kpre(p,w): lds_opnd_read(p,w,('k',0),0,B0,"kb0"); lds_opnd_read(p,w,('k',0),1,B1,"kb1")

class Filt:
    def __init__(self,p,cfg): self.p=p; self.cfg=cfg
    def __call__(self,text,tag=None):
        if self.cfg.get("nocheck") and text.startswith("s_cbranch_vccnz"): return
        if tag in self.cfg.get("drop",()): return
        self.p(text,tag)
    def __getattr__(self,n): return getattr(self.p,n)

def step(p0,cfg,w,par,slow,L):
    p=Filt(p0,cfg)
    st=" \\md"
    RSS=(sRSS0,sRSS1)[par]; RSL=(sRSL0,sRSL1)[par]; RSLprev=(sRSL0,sRSL1)[1-par]
    KXc=KXB+8192*par; KXn=KXB+8192*(1-par)
    sAGL,sAGS,sAGR=AGP[par]
    pp=1-par
    def ST(i):
        if cfg.get("fine") and i in cfg["fine"]: p("%s %s"%("s_memrealtime" if cfg.get("rt") else "s_memtime",s(78+2*i,2)),"fst")
    def nops(n):
        while n>0:
            p("s_nop %d"%(min(n,8)-1)); n-=8
    E=lambda r: p("v_exp_f32 %s, %s"%(v(r),v(r)))
    C=lambda d,a: p("v_cvt_pk_bf16_f32 %s, %s, %s"%(v(d),v(a),v(a+1)))
    def red(a,dst):
        return ["v_add_f32 %s, %s, %s"%(v(a),v(a),v(a+2)),"v_add_f32 %s, %s, %s"%(v(a+1),v(a+1),v(a+3)),"v_cvt_pk_bf16_f32 %s, %s, %s"%(v(dst),v(a),v(a+1))]
    pfn=[0]
    def PF(pos,q=None):
        q=q or p
        if "pfs" not in cfg or pos not in cfg["pfs"][w]: return
        n=cfg["pfs"][w].index(pos)
        q("s_mov_b32 m0, 0x%x"%JUNKB); add64(q,sTB,sKX,(0,1024,8192,8192+1024)[n]); q("global_load_lds_dword %s, %s sc1"%(v(L0),s(sTB,2)),"pf")
    p.label(L["qk"])
    ST(0)
    if w==0: p.vm.append(("ag2",set(),"pseudo"))
    NA=cfg.get("na",1)
    if w<NA and w>0: p.vm.append(("ag2",set(),"pseudo"))
    def first_reads(q):
        for k in range(3): mread(q,pp,k,RING[k])
        if NA>=2:
            mread(q,pp,3,RING[3])
            for k in range(4,3*NA): mread(q,pp,k,(XD if k==4 else STR+4*(k-5)),"pr0")
    def first_check(q):
        regs=[RING[0],RING[1],RING[2]]+([RING[3],XD]+[STR+4*(k-5) for k in range(5,3*NA)] if NA>=2 else [])
        q("v_add_f32 %s, %s, %s"%(v(PM),v(regs[0]),v(regs[1])))
        for r in regs[2:-1]: q("v_add_f32 %s, %s, %s"%(v(PM),v(PM),v(r)))
        q("v_cmp_u_f32 vcc, %s, %s"%(v(PM),v(regs[-1])))
    first_reads(p)
    p.label(L["back0"])
    A1,A2=cfg.get("a1",5),cfg.get("a2",17); D2=cfg.get("dma2",6)
    def opq(k,j): return (k,(AQ0,AQ1)[j],opnd_reg(('q',k),j),None)
    def opk(k,j):
        if ('k',k) in LDSREG: return (k,(AK0,AK1)[j],(B0,B1)[j],j)
        return (k,(AK0,AK1)[j],opnd_reg(('k',k),j),None)
    seq=[]
    for k in range(6): seq+=[opq(k,0),opq(k,1),opk(k,0),opk(k,1)]
    seq+=[opq(6,0),opk(6,0),opq(6,1),opk(6,1),opq(7,0),opk(7,0),opq(8,0),opk(8,0),opq(7,1),opk(7,1),opq(8,1),opk(8,1)]
    assert len(seq)==36 and len(set((x[0],x[1]) for x in seq))==36
    str_at={cfg.get("str0",9)+cfg.get("strs",4)*n:n for n in range(4)}
    tail0=red(AQ0,XD+1)+red(AK0,XD)
    def qk_body(q,local):
        rd_at={8:[5],20:[8]}
        if local: rd_at.update({5:[3,4],17:[6,7]})
        else:
            if NA>=2: rd_at[5]=[4]
            if NA>=3: rd_at[17]=[6,7]
        for idx,(k,d,b,lj) in enumerate(seq):
            if not local:
                if idx==D2 and w==2 and NA<3: ag_dma(q,pp,2,"ag" if NA<2 or D2>0 else "ag")
                if idx==D2+cfg.get("gap2",6) and w==2 and NA<3: ag_dma(q,pp,2,"ag2")
                if idx==cfg.get("g1b",1) and w==1 and NA<2: ag_dma(q,pp,1,"ag2")
                if idx==1:
                    q.wait(lg=["m2","pr0"]); first_check(q)
                if idx==2: q("s_cbranch_vccnz %s"%L["retry0"])
                if (idx==A1 and NA<2) or (idx==A2 and NA<3):
                    kk=3 if idx==A1 else 6
                    mread(q,pp,kk,RING[kk%4]); mread(q,pp,kk+1,RING[(kk+1)%4]); mread(q,pp,kk+2,XD,"pr")
                if (idx==11 and NA<2) or (idx==22 and NA<3):
                    kk=3 if idx==11 else 6
                    q.wait(lg="pr"); q("v_add_f32 %s, %s, %s"%(v(PM),v(RING[kk%4]),v(RING[(kk+1)%4]))); q("v_cmp_u_f32 vcc, %s, %s"%(v(PM),v(XD)))
                if (idx==12 and NA<2) or (idx==24 and NA<3):
                    sg_=1 if idx==12 else 2
                    q("s_cbranch_vccnz %s"%L["retry%d"%sg_]); q.label(L["back%d"%sg_])
                    if w==sg_: q.vm.append(("ag2",set(),"pseudo"))
            for kk in rd_at.get(idx,()): mread(q,pp,kk,RING[kk%4])
            q.wait(lg="m%d"%k)
            if lj is not None: q.wait(lg="kb%d"%lj)
            smf(q,d,RING[k%4],b)
            if lj is not None and ('k',k+2) in LDSREG: lds_opnd_read(q,w,('k',k+2),lj,b,"kb%d"%lj)
            if not local:
                if idx in str_at:
                    n=str_at[idx]; q("global_load_dwordx4 %s, %s, %s offset:%d"%(v(STR+4*n,4),v(L0),s(sSTR,2),n*1024-4096),"sb")
                pf0=cfg.get("pf0",24)
                PF(idx,q)
                if "pfs" in cfg: pass
                elif cfg.get("pf4") and pf0<=idx<pf0+8 and (idx-pf0)%2==0:
                    n=(idx-pf0)//2
                    if n==0: q("s_mov_b32 m0, 0x%x"%JUNKB); q("s_nop 0"); q("global_load_lds_dword %s, %s sc1"%(v(L0),s(sKX,2)),"pf")
                    else:
                        q("s_mov_b32 m0, 0x%x"%JUNKB); add64(q,sTB,sKX,(1024,8192+1024,8192)[n-1]); q("global_load_lds_dword %s, %s sc1"%(v(L0),s(sTB,2)),"pf")
                elif cfg.get("pf4"): pass
                elif w==3 and idx==pf0:
                    q("v_lshlrev_b32 %s, 3, %s"%(v(PM),v(L0))); q("s_mov_b32 m0, 0x%x"%JUNKB)
                    q("s_sub_u32 %s, %s, 6144"%(s(sTB),s(sKX))); q("s_subb_u32 %s, %s, 0"%(s(sTB+1),s(sKX+1)))
                    q("global_load_lds_dword %s, %s sc1"%(v(PM),s(sTB,2)),"pf")
                elif w==3 and idx==pf0+2:
                    q("v_lshlrev_b32 %s, 3, %s"%(v(PM),v(L0))); q("s_mov_b32 m0, 0x%x"%JUNKB)
                    add64(q,sTB,sKX,2048); q("global_load_lds_dword %s, %s sc1"%(v(PM),s(sTB,2)),"pf")
                if idx==30: add64(q,sTA,sKX,8192)
                if idx==cfg.get("sig_at",24) and w==3 and cfg.get("signal"):
                    q("v_mov_b32 %s, %s"%(v(XD),s(sFKM))); q("v_mov_b32 %s, 1"%v(XD+1)); q("s_mov_b64 exec, 1")
                    q("global_atomic_add %s, %s, %s"%(v(XD),v(XD+1),s(sWS,2)),"sig"); q("s_mov_b64 exec, -1")
                    q("s_add_u32 %s, %s, 128"%(s(sFKM),s(sFKM)))
            if idx in (32,33): zero(q,VACC+4*(idx-32),2)
            if idx==33: q(tail0[0])
            if idx==34: q(tail0[1]); q(tail0[2]); q(tail0[3])
            if idx==35: q(tail0[4]); q(tail0[5]); q("ds_write_b64 %s, %s"%(v(XW),v(XD,2)),"xw")
        zero(q,VACC+2,2); zero(q,VACC+6,2)
    qk_body(p,False)
    p.label(L["postqk"])
    ST(1)
    vslot={8:0,7:3,6:2,0:1,1:0,2:3,3:2,4:1,5:0}
    def V(k,j):
        p.wait(lg="v%d"%k)
        if ('v',k) in STR_BLOCKS: p.wait(vm="sb"); b=STR+8*j
        else: b=opnd_reg(('v',k),j)
        smf(p,VACC+4*j,RING[vslot[k]],b)
    def vr(k): mread(p,pp,k,RING[vslot[k]],"v%d"%k)
    KX1=[B1,B1+4,RING[3],RING[2]]
    def kxr(T,ks):
        r_,im=lds_addr(KXc+(4*T+ks)*1024)
        p("ds_read_b128 %s, %s offset:%d"%(v(ACC+4*ks if T==0 else KX1[ks],4),v(r_),im),"kx%d%d"%(T,ks))
    pub=cfg["pub_mod"]
    V(8,0)
    for x in red(AQ1,XD+3)+red(AK1,XD+2): p(x)
    p("ds_write_b64 %s, %s offset:512"%(v(XW),v(XD+2,2)),"xw")
    p("v_cmp_u_f32 vcc, %s, %s"%(v(AK1),v(AK1+1)))
    V(8,1); vr(0); vr(1)
    V(7,0); kxr(0,0); kxr(0,1); PF(40)
    V(7,1); p("s_cbranch_vccnz %s"%L["retry_ag"]); vr(2)
    V(6,0); kxr(0,2); kxr(0,3); PF(42)
    V(6,1); vr(3)
    V(0,0)
    p.wait(vm="ag2",lg="xw"); p("s_barrier"); ST(2)
    X=lambda ks: STR+4*ks
    for ks in range(4):
        for rr in range(2):
            p("ds_read_b64_tr_b16 %s, %s offset:%d"%(v(X(ks)+2*rr,2),v(XR),1024*ks+512*rr),"x%d"%ks)
        if ks==1: V(0,1)
    V(1,0); kxr(1,0); kxr(1,1); vr(4)
    V(1,1); vr(5); PF(46)
    V(2,0); PF(47)
    V(2,1); kxr(1,2)
    V(3,0); PF(49)
    V(3,1); kxr(1,3)
    rs_=[]
    if cfg.get("rst_s") and w<3:
        rs_=["global_store_dwordx4 %s, %s, %s offset:%d%s"%(v(L0),v(RQ,4),s(RSLprev,2),1024*k,st) for k in range(3)]+["global_store_dword %s, %s, %s%s"%(v(AGST),v(RQ),s(sAGR,2),st)]
    S0,S1,SM,ONES,LA=XD,ACC,ACC+4,ACC+8,ACC+12
    P=S0; VXa,VXb=B1,B1+4; Oa,Ob=STR,STR+4; OD=STR+8
    for ks in range(4):
        p.wait(lg=["x%d"%ks,"kx0%d"%ks]); mf(p,S0,ACC+4*ks,X(ks),None if ks==0 else S0)
    p("global_store_dwordx4 %s, %s, %s offset:%d%s"%(v(L0),v(X(w),4),s(sKVM,2),1024*w-4096,pub),"pub")
    r_,im=lds_addr(VXB+2048*w)
    one=lambda i: p("v_mov_b32 %s, %s"%(v(ONES+i),s(sONE)))
    p.wait(lg="kx10"); mf(p,S1,KX1[0],X(0)); PF(55); one(0); one(1)
    p.wait(lg="kx11"); mf(p,S1,KX1[1],X(1),S1); p("ds_read_b128 %s, %s offset:%d"%(v(VXa,4),v(r_),im),"vx"); p("ds_read_b128 %s, %s offset:%d"%(v(VXb,4),v(r_),im+1024),"vx"); one(2); one(3)
    p.wait(lg="kx12"); mf(p,S1,KX1[2],X(2),S1); PF(57); E(S0)
    p.wait(lg="kx13"); mf(p,S1,KX1[3],X(3),S1); E(S0+1)
    mf(p,SM,X(0),X(0)); PF(59); E(S0+2)
    mf(p,SM,X(1),X(1),SM); PF(60); E(S0+3)
    mf(p,SM,X(2),X(2),SM); C(P,S0); C(P+1,S0+2)
    mf(p,SM,X(3),X(3),SM); PF(62); E(S1)
    V(4,0); E(S1+1)
    if rs_: p("v_mov_b64 %s, -1"%v(RQ,2)); p("v_mov_b64 %s, -1"%v(RQ+2,2))
    V(4,1); PF(64); E(S1+2)
    V(5,0); PF(65); E(S1+3); p("v_mul_f32 %s, %s, %s"%(v(SM),s(sC),v(SM)))
    V(5,1); C(P+2,S1); C(P+3,S1+2); p("v_mul_f32 %s, %s, %s"%(v(SM+1),s(sC),v(SM+1)))
    p.wait(lg="vx")
    R2=rs_ if cfg.get("rst_s")==2 else []
    mf(p,LA,P,ONES)
    if R2 and w==0: p(R2[0],"rst"); p(R2[3],"rst")
    E(SM)
    mf(p,Oa,P,VXa)
    if R2 and w==1: p(R2[0],"rst"); p(R2[3],"rst")
    E(SM+1)
    ra,rb=red(VACC,VXa),red(VACC+4,VXb)
    mf(p,Ob,P,VXb)
    if R2 and w==2: p(R2[0],"rst"); p(R2[3],"rst")
    C(PM,SM); p(ra[0])
    p(ra[1]); p(ra[2])
    mf16(p,LA,PM,ONES,LA); PF(70); p(rb[0]); p(rb[1])
    mf16(p,Oa,PM,VXa,Oa); p(rb[2]); p("v_lshrrev_b32 %s, 2, %s"%(v(S1),v(L0)))
    p("global_store_dword %s, %s, %s offset:%d%s"%(v(S1),v(VXa),s(sKVM,2),512*w,pub),"pub")
    mf16(p,Ob,PM,VXb,Ob)
    p("global_store_dword %s, %s, %s offset:%d%s"%(v(S1),v(VXb),s(sKVM,2),512*w+256,pub),"pub")
    ST(3)
    R0,R1=OD+2,OD+3
    p("v_rcp_f32 %s, %s"%(v(R0),v(LA+2))); p("v_rcp_f32 %s, %s"%(v(R1),v(LA+3)))
    p("v_subrev_u32 %s, %s, %s"%(v(LA),s(sLO),v(LA+2))); p("v_subrev_u32 %s, %s, %s"%(v(LA+1),s(sLO),v(LA+3)))
    owoff=OB-XB-(w//2)*2044
    for j,o in enumerate((Oa,Ob)):
        p("v_mul_f32 %s, %s, %s"%(v(o+2),v(o+2),v(R0))); p("v_mul_f32 %s, %s, %s"%(v(o+3),v(o+3),v(R1)))
        C(OD+j,o+2)
        p("ds_write_b32 %s, %s offset:%d"%(v(XW),v(OD+j),owoff+512*j),"ow")
    p("v_max_u32 %s, %s, %s"%(v(LA),v(LA),v(LA+1)))
    p("v_cmp_le_u32 vcc, %s, %s"%(s(sRNG),v(LA)))
    if rs_ and cfg["rst_s"]==1:
        for x in rs_: p(x,"rst")
    if R2: p(R2[1],"rst")
    zero(p,12,12)
    if R2: p(R2[2],"rst")
    p("s_cbranch_vccnz %s"%L["slow"])
    p.label(L["oskip"])
    p("s_mov_b32 m0, 0x%x"%(VXB+2048*w))
    zero(p,24,4)
    p("global_load_lds_dwordx4 %s, %s sc1"%(v(L0),s(sTA,2)),"kxn")
    p("global_load_lds_dwordx4 %s, %s offset:1024 sc1"%(v(L0),s(sTA,2)),"kxn")
    p.wait(lg="ow"); p("s_barrier"); ST(4)
    OA=VACC
    for ks in range(2):
        for rr in range(2):
            p("ds_read_b64_tr_b16 %s, %s offset:%d"%(v(OA+4*ks+2*rr,2),v(XR),OB-XB+1024*ks+512*rr),"oa%d"%ks)
    p("s_mov_b32 m0, 0x%x"%(KXn+2048*w))
    p("s_cmp_eq_u32 %s, %s"%(s(sSTEP),s(sNEXT)))
    p("global_load_lds_dwordx4 %s, %s sc1"%(v(L0),s(sKX,2)),"kxn")
    p("global_load_lds_dwordx4 %s, %s offset:1024 sc1"%(v(L0),s(sKX,2)),"kxn")
    p("s_cbranch_scc1 %s"%L["event"])
    p.label(L["resume"])
    OACC={8:12,0:16,1:20, 2:24,3:28,4:32, 5:36,6:40,7:76}
    BUF=[52,60,68]
    src={(2,1):BUF[0],(3,1):BUF[1],(4,1):BUF[2],(5,1):BUF[0],(6,1):BUF[1],(7,1):BUF[2]}
    refill={(2,1):(5,1),(3,1):(6,1),(4,1):(7,1)}
    def lo(nk):
        b,j=o_opnd(*nk); lds_opnd_read(p,w,b,j,src[nk],"lo%d%d"%nk)
    def OM(tau,ks):
        key=(tau,ks)
        p.wait(lg="oa%d"%ks)
        if key in src:
            p.wait(lg="lo%d%d"%key); smf(p,OACC[tau],OA+4*ks,src[key])
        else:
            b,j=o_opnd(tau,ks); smf(p,OACC[tau],OA+4*ks,opnd_reg(b,j))
        if key in refill: lo(refill[key])
    def fin_ops(sg_):
        c_,a_,b_=STAGES[sg_]; cc,aa,bb=OACC[c_],OACC[a_],OACC[b_]
        return ["v_add_f32 %s, %s, %s"%(v(cc),v(cc),v(cc+2)),"v_add_f32 %s, %s, %s"%(v(cc+1),v(cc+1),v(cc+3)),
         "v_cvt_pk_bf16_f32 %s, %s, %s"%(v(cc),v(cc),v(cc+1)),
         "v_add_f32 %s, %s, %s"%(v(aa+2),v(aa),v(aa+2)),"v_add_f32 %s, %s, %s"%(v(aa+3),v(aa+1),v(aa+3)),
         "v_mov_b32_dpp %s, %s quad_perm:[1,0,3,2] row_mask:0xf bank_mask:0xf"%(v(cc+1),v(cc)),
         "v_perm_b32 %s, %s, %s, %s"%(v(aa),v(cc+1),v(cc),v(PERM)),
         "v_add_f32 %s, %s, %s"%(v(bb),v(bb),v(bb+2)),"v_add_f32 %s, %s, %s"%(v(bb+1),v(bb+1),v(bb+3)),
         "v_cvt_pk_bf16_f32 %s, %s, %s"%(v(aa+1),v(aa+2),v(bb)),"v_cvt_pk_bf16_f32 %s, %s, %s"%(v(aa+2),v(aa+3),v(bb+1)),
         "global_store_dwordx3 %s, %s, %s offset:%d%s"%(v(RSST),v(aa,3),s(RSS,2),3072*(sg_-1),st)]
    GA=[12,16,20,24]; GB=[28,32,36,40]; GC=[60,64,68,72]
    def gather(GS,tg,q=None):
        for u in range(4): (q or p)("global_load_dwordx3 %s, %s, %s offset:%d sc1"%(v(GS[u],3),v(RSLD),s(RSL,2),768*u),"%s%d"%(tg,u))
    def gz(GS,q=None):
        for r in GS: (q or p)("v_mov_b32 %s, 0"%v(r+3))
    f0,f1,f2=fin_ops(0),fin_ops(1),fin_ops(2)
    Z=lambda r: zero(p,r,2)
    OM(8,0); lo((2,1)); Z(28)
    OM(8,1); lo((3,1)); Z(30)
    OM(0,0); lo((4,1)); Z(32)
    OM(0,1); p("s_add_u32 %s, %s, 1"%(s(sSTEP),s(sSTEP))); Z(34)
    OM(1,0)
    if not cfg.get("fix_kx"): add64(p,sKX,sKX,KV_S)
    p(f0[0])
    OM(1,1)
    if not cfg.get("fix_pub"): add64(p,sKVM,sKVM,KVM_S)
    p(f0[1]); p(f0[2])
    OM(2,0); p(f0[3]); p(f0[4]); p(f0[5])
    OM(2,1)
    for x in f0[6:11]: p(x)
    p(f0[11],"rs0"); ST(5)
    OM(3,0); Z(36)
    OM(3,1); Z(38)
    OM(4,0); p(f1[0]); Z(40)
    OM(4,1); p(f1[1]); p(f1[2]); Z(42)
    OM(5,0); p(f1[3]); p(f1[4]); p(f1[5]); Z(76)
    OM(5,1); Z(78)
    for x in f1[6:11]: p(x)
    p(f1[11],"rs1")
    g0=cfg.get("g0",2)
    for n_,(a_,b_) in enumerate(((6,0),(6,1),(7,0),(7,1))):
        if w==0 and g0==n_: gather(GA,"g")
        OM(a_,b_)
        if n_==2: p(f2[0])
        if n_==3: p(f2[1]); p(f2[2])
    if w==0 and g0==4: gather(GA,"g")
    for x in f2[3:7]: p(x)
    if w<3: gz(GA)
    for x in f2[7:11]: p(x)
    p(f2[11],"rs2"); ST(6)
    SELR=XD; RD=B0
    def reduce(GS,tg,q=None,fail=None):
        main=q is None
        q=q or p
        T_=RD+4
        q.wait(lg="sel")
        for u in range(4):
            q.wait(vm="%s%d"%(tg,u)); mf(q,RD,SELR,GS[u],None if u==0 else RD)
            if u==0: q("v_max3_u32 %s, %s, %s, %s"%(v(T_),v(GS[0]),v(GS[0]+1),v(GS[0]+2)))
            else:
                q("v_max3_u32 %s, %s, %s, %s"%(v(T_),v(T_),v(GS[u]),v(GS[u]+1))); q("v_max_u32 %s, %s, %s"%(v(T_),v(T_),v(GS[u]+2)))
        q("v_cmp_eq_u32 vcc, -1, %s"%v(T_))
        q("s_nop 3")
        q("s_cbranch_vccnz %s"%(fail or L["retry_rs"]))
        q("v_add_f32_dpp %s, %s, %s row_ror:8 row_mask:0xf bank_mask:0xf"%(v(RD+2),v(RD),v(RD)))
        q("v_add_f32_dpp %s, %s, %s row_ror:8 row_mask:0xf bank_mask:0xf"%(v(RD+3),v(RD+1),v(RD+1)))
        q("v_cvt_pk_bf16_f32 %s, %s, %s"%(v(RD),v(RD+2),v(RD+3)))
        q("global_store_dword %s, %s, %s%s"%(v(AGST),v(RD),s(sAGS,2),st),"agst")
        if main:
            p.label(L["rs_done"])
            p.vm.insert(len(p.vm)-1,("gen",{("v",r) for r in list(range(12,44))+list(range(60,76))},"pseudo"))
    def after():
        kpre(p,w); p.wait(vm="gen"); zero(p,ACC,16)
    def resets():
        if cfg.get("rst_s"): return
        p("v_mov_b64 %s, -1"%v(60,2)); p("v_mov_b64 %s, -1"%v(62,2))
        for k in range(3): p("global_store_dwordx4 %s, %s, %s offset:%d%s"%(v(L0),v(60,4),s(RSL,2),1024*k,st),"rst")
        p("global_store_dword %s, %s, %s%s"%(v(AGST),v(60),s(sAGR,2),st),"rst")
    def stampit():
        if cfg.get("stamps"):
            p.wait(lg="all")
            p("s_memtime %s"%s(sSTAMP,2),"stamp"); p.wait(lg="all")
            p("v_mov_b32 %s, %s"%(v(60),s(sSTAMP))); p("v_mov_b32 %s, %s"%(v(61),s(sCA))); p("v_mov_b32 %s, %s"%(v(62),s(sCR)))
            p("global_store_dwordx3 %s, %s, %s"%(v(ZERO),v(60,3),s(sSTP,2)),"stampst")
            if cfg.get("fine"):
                for q in range(3):
                    for i in range(3): p("v_mov_b32 %s, %s"%(v(64+i),s(78+2*(3*q+i))))
                    p("global_store_dwordx3 %s, %s, %s offset:%d"%(v(ZERO),v(64,3),s(sSTP,2),16+12*q),"stampst")
            add64(p,sSTP,sSTP,64)
    dg=cfg.get("dg",[0,16,48]); da=cfg.get("da",[16,16]); db=cfg.get("db",[0,16,24])
    if w<3:
        p("v_and_b32 %s, 0x200ff, %s"%(v(PM),v(L2)))
        p("ds_read_b128 %s, %s offset:%d"%(v(SELR,4),v(PM),SELB-131072),"sel")
    def prefill():
        p("v_mov_b64 %s, -1"%v(60,2)); p("v_mov_b64 %s, -1"%v(62,2))
        for k in range(3*w,3*w+3):
            r_,im=lds_addr(stg_addr(par,k)); p("ds_write_b128 %s, %s offset:%d"%(v(r_),v(60,4),im),"pre")
    if w==0:
        if g0==5: nops(dg[0]); gather(GA,"g")
        ag_ptrs(p,1-par,0); nops(db[0]); gather(GB,"h"); gz(GB); reduce(GA,"g"); ST(7); after(); nops(da[0])
        ag_dma(p,par,0); stampit(); nops(cfg.get("gap0",20)); ag_dma(p,par,0,"ag2"); resets(); p.wait(vm="ag")
    elif w==1:
        prefill(); ag_ptrs(p,1-par,3072); nops(dg[1]); gather(GA,"g"); gz(GB); nops(db[1]); gather(GB,"h"); reduce(GA,"g"); ST(7); after(); nops(da[1]); ag_dma(p,par,1); stampit()
        if NA>=2: nops(cfg.get("gap0",20)); ag_dma(p,par,1,"ag2"); resets(); p.wait(vm="ag")
        else: resets()
    elif w==2:
        prefill(); ag_ptrs(p,1-par,6144); nops(dg[2]); gather(GA,"g"); gz(GB); nops(db[2]); gather(GB,"h"); reduce(GA,"g"); ST(7); after(); stampit()
        if NA>=3: nops(da[1]); ag_dma(p,par,2); nops(cfg.get("gap0",20)); ag_dma(p,par,2,"ag2"); resets(); p.wait(vm="ag")
        else: nops(cfg.get("dr",10)); resets()
    else:
        after(); ag_ptrs(p,1-par,0); ST(7); stampit()
    p.wait(vm=["kxn","pub"])
    ST(8)
    p("s_barrier")
    return dict(gather=gather,gz=gz,reduce=reduce,qk_body=qk_body,SETS=[GB,GC,GA],first_reads=first_reads,first_check=first_check,NA=NA)

def slow_softmax(p,w,par,L):
    KXc=KXB+8192*par
    p.label(L["slow"],reset=True)
    p("s_waitcnt lgkmcnt(0)"); p("s_nop 7")
    S0,S1,SM,XT,KT=12,16,20,24,28
    ONES,LA=ACC+8,ACC+12
    P=XD; VXa,VXb=B1,B1+4; Oa,Ob=STR,STR+4; OD=STR+8
    for ks in range(4):
        for rr in range(2): p("ds_read_b64_tr_b16 %s, %s offset:%d"%(v(XT+2*rr,2),v(XR),1024*ks+512*rr),"a")
        for T in range(2):
            r_,im=lds_addr(KXc+(4*T+ks)*1024)
            p("ds_read_b128 %s, %s offset:%d"%(v(KT+4*T,4),v(r_),im),"a")
        p.wait(lg="all")
        mf(p,S0,KT,XT,None if ks==0 else S0); mf(p,S1,KT+4,XT,None if ks==0 else S1); mf(p,SM,XT,XT,None if ks==0 else SM)
        p("s_nop 7")
    p("v_mul_f32 %s, %s, %s"%(v(SM),s(sC),v(SM))); p("v_mul_f32 %s, %s, %s"%(v(SM+1),s(sC),v(SM+1)))
    m,m2=SM+2,SM+3
    p("v_max3_f32 %s, %s, %s, %s"%(v(m),v(SM),v(SM+1),v(S0)))
    p("v_max3_f32 %s, %s, %s, %s"%(v(m),v(m),v(S0+1),v(S0+2)))
    p("v_max3_f32 %s, %s, %s, %s"%(v(m),v(m),v(S0+3),v(S1)))
    p("v_max3_f32 %s, %s, %s, %s"%(v(m),v(m),v(S1+1),v(S1+2)))
    p("v_max_f32 %s, %s, %s"%(v(m),v(m),v(S1+3)))
    for op in ("v_permlane16_swap_b32","v_permlane32_swap_b32"):
        p("v_mov_b32 %s, %s"%(v(m2),v(m))); p("%s %s, %s"%(op,v(m),v(m2))); p("s_nop 1"); p("v_max_f32 %s, %s, %s"%(v(m),v(m),v(m2)))
    for r in [S0,S0+1,S0+2,S0+3,S1,S1+1,S1+2,S1+3,SM,SM+1]:
        p("v_sub_f32 %s, %s, %s"%(v(r),v(r),v(m))); p("v_exp_f32 %s, %s"%(v(r),v(r)))
    C=lambda d,a: p("v_cvt_pk_bf16_f32 %s, %s, %s"%(v(d),v(a),v(a+1)))
    C(P,S0); C(P+1,S0+2); C(P+2,S1); C(P+3,S1+2); C(PM,SM)
    r_,im=lds_addr(VXB+2048*w)
    p("ds_read_b128 %s, %s offset:%d"%(v(KT,4),v(r_),im),"a"); p("ds_read_b128 %s, %s offset:%d"%(v(KT+4,4),v(r_),im+1024),"a")
    p.wait(lg="all")
    mf(p,Oa,P,KT); mf(p,Ob,P,KT+4); mf(p,LA,P,ONES)
    mf16(p,LA,PM,ONES,LA); mf16(p,Oa,PM,VXa,Oa); mf16(p,Ob,PM,VXb,Ob)
    R0,R1=OD+2,OD+3
    p("v_rcp_f32 %s, %s"%(v(R0),v(LA+2))); p("v_rcp_f32 %s, %s"%(v(R1),v(LA+3)))
    owoff=OB-XB-(w//2)*2044
    for j,o in enumerate((Oa,Ob)):
        p("v_mul_f32 %s, %s, %s"%(v(o+2),v(o+2),v(R0))); p("v_mul_f32 %s, %s, %s"%(v(o+3),v(o+3),v(R1)))
        C(OD+j,o+2)
        p("ds_write_b32 %s, %s offset:%d"%(v(XW),v(OD+j),owoff+512*j),"ow")
    p.wait(lg="all")
    zero(p,12,12)
    p("s_nop 3")
    p("s_branch %s"%L["oskip"])

def loops(p,cfg):
    def budget(): p("s_sub_u32 %s, %s, 1"%(s(sBUD),s(sBUD))); p("s_cbranch_scc1 %s"%cfg["abort"])
    p.raw(".macro CHAINLOOPS sfx, md"); p.lab_sfx="\\sfx\\()"
    for slow in ("\\sfx\\()",):
        for w in range(4):
            nm="C%s%d"%(slow,w)
            LL=[{k:"%s_%d_%s"%(nm,par,k) for k in ("qk","retry_ag","slow","oskip","rs_done","retry_rs","retry0","retry1","retry2","back0","back1","back2","postqk","event","resume")} for par in range(2)]
            for L in LL: L["done"]=cfg["done"]
            p.raw(".p2align 6")
            p.label("CE%s%d"%(slow,w),reset=True)
            p.vm=[]; p.lg=[]
            kpre(p,w); zero(p,ACC,16)
            p("s_nop 1")
            keep=len(p.items)
            for par in range(2): step(p,cfg,w,par,slow,LL[par])
            del p.items[keep:]
            G=[step(p,cfg,w,par,slow,LL[par]) for par in range(2)]
            p("s_branch %s"%LL[0]["qk"])
            for par in range(2):
                L=LL[par]; pp=1-par
                p.label(L["retry_ag"],reset=True); p.vm=[]; p.lg=[]
                p("s_waitcnt vmcnt(0) lgkmcnt(0)")
                p("s_add_u32 %s, %s, 0x10000"%(s(sCA),s(sCA))); budget()
                for k in range(9):
                    add64(p,sTA,AGP[pp][1],1024*k); p("s_mov_b32 m0, 0x%x"%stg_addr(pp,k))
                    p("global_load_lds_dwordx4 %s, %s sc1"%(v(L0),s(sTA,2)))
                kpre(p,w); zero(p,ACC,16)
                p("s_waitcnt vmcnt(0)")
                for k in range(3): mread(p,pp,k,RING[k])
                add64(p,sTA,sKX,8192)
                G[par]["qk_body"](p,True)
                p("s_nop 1")
                p("s_branch %s"%L["postqk"])
                for sg_ in range(3):
                    if 0<sg_<G[par]["NA"]: continue
                    lab=L["retry%d"%sg_]
                    p.label(lab,reset=True); p.vm=[]; p.lg=[]; p.check=False
                    p("s_add_u32 %s, %s, 1"%(s(sCA),s(sCA)))
                    if sg_==0: p("s_waitcnt lgkmcnt(0)"); p("s_nop 3"); zero(p,AQ0,8)
                    p.label(lab+"_p")
                    NA=G[par]["NA"]
                    if sg_==0:
                        if w<NA: ag_dma(p,pp,w); p("s_waitcnt vmcnt(3)")
                        G[par]["first_reads"](p); budget(); p("s_waitcnt lgkmcnt(0)"); G[par]["first_check"](p)
                    else:
                        if w==sg_: ag_dma(p,pp,sg_); p("s_waitcnt vmcnt(3)")
                        kk=3*sg_
                        for u in range(3): mread(p,pp,kk+u,RING[(kk+u)%4])
                        budget(); p("s_waitcnt lgkmcnt(0)")
                        p("v_add_f32 %s, %s, %s"%(v(PM),v(RING[kk%4]),v(RING[(kk+1)%4]))); p("v_cmp_u_f32 vcc, %s, %s"%(v(PM),v(RING[(kk+2)%4])))
                    p("s_cbranch_vccnz %s_p"%lab)
                    p("s_branch %s"%L["back%d"%sg_])
                if w<3:
                    lab=L["retry_rs"]
                    p.label(lab,reset=True); p.vm=[]; p.lg=[]; p.check=False
                    SETS=G[par]["SETS"]
                    p("s_add_u32 %s, %s, 1"%(s(sCR),s(sCR)))
                    G[par]["gather"](SETS[1],"z",p); G[par]["gz"](SETS[1],p)
                    for k in range(3):
                        p.label(lab+"_e%d"%k,reset=True); p.vm=[("x%d"%u,set()) for u in range(4)]+[("y",set())]*4; p.lg=[]
                        G[par]["reduce"](SETS[k],"x",p,lab+"_f%d"%k)
                        p("s_branch %s"%L["rs_done"])
                        p.label(lab+"_f%d"%k,reset=True)
                        G[par]["gather"](SETS[(k+2)%3],"z",p); budget(); p("s_add_u32 %s, %s, 0x10000"%(s(sCR),s(sCR)))
                    p("s_branch %s_e0"%lab)
                p.check=True
                p.label(L["event"],reset=True); p.vm=[]; p.lg=[]
                p("s_cmp_eq_u32 %s, 63"%s(sSTEP)); p("s_cbranch_scc1 %s"%cfg["done"])
                p("s_mov_b32 %s, 63"%s(sNEXT))
                cfg["hook_late"](p)
                p("s_branch %s"%L["resume"])
                p.vm=[]; p.lg=[]
                slow_softmax(p,w,par,L)
    p.raw(".endm"); p.lab_sfx=""
    p.raw("CHAINLOOPS 0,")
    p.raw("CHAINLOOPS 1, sc1")
```

```python
from prog import *
from layout import *
import struct, math
def f2u(x): return struct.unpack("<I",struct.pack("<f",x))[0]
CB=math.log2(math.e)/math.sqrt(128.0); CA=math.log2(math.e)/math.sqrt(18.0)

sWQ,sWK,sWV,sWO,sMEM0,sWS,sDBG = 4,6,8,10,12,14,16
sIDX,sW = 18,19
sX,sWA,sWOA,sGW,sOUT = 20,22,24,26,28
sBUD=30
sT=list(range(32,48))
SRDW=48; SRDX=52
sTASK,sM,sN,sKIND=56,57,58,59
sXO,sWOFF,sWSTEP=60,61,62
sDST=64
sSC=66
NST=4; STG=32768

def add64(p,dst,src,imm):
    p("s_add_u32 %s, %s, 0x%x"%(s(dst),s(src),imm)); p("s_addc_u32 %s, %s, 0"%(s(dst+1),s(src+1)))
def add64s(p,dst,src,sreg):
    p("s_add_u32 %s, %s, %s"%(s(dst),s(src),s(sreg))); p("s_addc_u32 %s, %s, 0"%(s(dst+1),s(src+1)))

def signal(p,flag_s,st):
    p("s_waitcnt vmcnt(0)"); p("s_barrier")
    L=p.newlabel("SIG")
    p("s_cmp_lg_u32 %s, 0"%s(sW)); p("s_cbranch_scc1 %s"%L)
    p("s_lshl_b32 %s, %s, 7"%(s(sT[0]),s(flag_s))); p("s_add_u32 %s, %s, 0x%x"%(s(sT[0]),s(sT[0]),WS_FLAG))
    p("s_mov_b64 exec, 1"); p("v_mov_b32 v2, %s"%s(sT[0])); p("v_mov_b32 v3, 1")
    p("global_atomic_add v2, v3, %s"%s(sWS,2)); p("s_mov_b64 exec, -1")
    p.label(L)

def wait_flag(p,flag_s,count,abort,vt):
    L=p.newlabel("WF")
    p("s_lshl_b32 %s, %s, 7"%(s(sT[0]),s(flag_s))); p("s_add_u32 %s, %s, 0x%x"%(s(sT[0]),s(sT[0]),WS_FLAG))
    p("v_mov_b32 %s, %s"%(v(vt),s(sT[0])))
    Lg=p.newlabel("WG")
    p.label(L)
    p("global_load_dword %s, %s, %s sc1"%(v(vt+1),v(vt),s(sWS,2)),"fl"); p("s_waitcnt vmcnt(0)")
    p("v_readfirstlane_b32 %s, %s"%(s(sT[1]),v(vt+1)))
    p("s_cmp_ge_u32 %s, %d"%(s(sT[1]),count)); p("s_cbranch_scc1 %s"%Lg)
    p("s_sub_u32 %s, %s, 1"%(s(sBUD),s(sBUD))); p("s_cbranch_scc1 %s"%abort)
    p("s_sleep 8"); p("s_branch %s"%L)
    p.label(Lg)

LANE,XD_,WD_,XR_,WR0,WR1,EA,EB = 0,1,4,5,6,7,8,9
TV=[10,11,12,13,14,15]
def accreg(i,j):
    n=4*i+j
    return v(16+16*n,16) if n<15 else acc(0,16)
XOP=[16,48]; WOP=[32,64]

def gemm_tasks(p,cfg,nworkers,Lnext,abort):
    st=cfg.get("st"," sc1")
    Ltop=p.newlabel("GT");
    p("s_mov_b32 %s, %s"%(s(sTASK),s(sIDX)))
    p("s_mov_b32 %s, %s"%(s(SRDX),s(sX))); p("s_and_b32 %s, %s, 0xffff"%(s(SRDX+1),s(sX+1))); p("s_mov_b32 %s, %d"%(s(SRDX+2),S*D*2)); p("s_mov_b32 %s, 0x20000"%s(SRDX+3))
    p("s_mov_b32 %s, 0x20000"%s(SRDW+3))
    t0,t1,t2,t3=TV[:4]
    p("v_lshrrev_b32 %s, 2, v0"%v(t0)); p("s_lshl_b32 %s, %s, 4"%(s(sT[0]),s(sW))); p("v_add_u32 %s, %s, %s"%(v(t0),s(sT[0]),v(t0)))
    p("v_mul_u32_u24 %s, 1152, %s"%(v(t0),v(t0)))
    p("v_lshrrev_b32 %s, 4, v0"%v(t1)); p("v_xor_b32 %s, v0, %s"%(v(t1),v(t1))); p("v_and_b32 %s, 3, %s"%(v(t1),v(t1)))
    p("v_lshl_add_u32 %s, %s, 4, %s"%(v(XD_),v(t1),v(t0)))
    p.label(Ltop,reset=True)
    p("s_cmp_ge_u32 %s, 480"%s(sTASK)); p("s_cbranch_scc1 %s"%Lnext)
    La,Lq,Ld=p.newlabel("GA"),p.newlabel("GQ"),p.newlabel("GD")
    p("s_cmp_ge_u32 %s, 352"%s(sTASK)); p("s_cbranch_scc1 %s"%Lq)
    p("s_cmp_ge_u32 %s, 256"%s(sTASK)); p("s_cbranch_scc1 %s"%La)
    p("s_lshr_b32 %s, %s, 5"%(s(sM),s(sTASK))); p("s_and_b32 %s, %s, 15"%(s(sN),s(sTASK))); p("s_bfe_u32 %s, %s, 0x10004"%(s(sKIND),s(sTASK)))
    p("s_cmp_eq_u32 %s, 0"%s(sKIND)); p("s_cselect_b32 %s, %s, %s"%(s(SRDW),s(sWK),s(sWV))); p("s_cselect_b32 %s, %s, %s"%(s(SRDW+1),s(sWK+1),s(sWV+1)))
    p("s_branch %s"%Ld)
    p.label(Lq)
    p("s_sub_u32 %s, %s, 352"%(s(sT[0]),s(sTASK))); p("s_lshr_b32 %s, %s, 4"%(s(sM),s(sT[0]))); p("s_and_b32 %s, %s, 15"%(s(sN),s(sT[0]))); p("s_mov_b32 %s, 2"%s(sKIND))
    p("s_mov_b32 %s, %s"%(s(SRDW),s(sWQ))); p("s_mov_b32 %s, %s"%(s(SRDW+1),s(sWQ+1)))
    p("s_branch %s"%Ld)
    p.label(La)
    p("s_sub_u32 %s, %s, 256"%(s(sT[0]),s(sTASK))); p("s_and_b32 %s, %s, 7"%(s(sM),s(sT[0]))); p("s_lshr_b32 %s, %s, 3"%(s(sN),s(sT[0])))
    p("s_lshr_b32 %s, %s, 2"%(s(sKIND),s(sN))); p("s_add_u32 %s, %s, 3"%(s(sKIND),s(sKIND)))
    p("s_mov_b32 %s, %s"%(s(SRDW),s(sWA))); p("s_mov_b32 %s, %s"%(s(SRDW+1),s(sWA+1)))
    p.label(Ld)
    p("s_and_b32 %s, %s, 0xffff"%(s(SRDW+1),s(SRDW+1)))
    RS_,BS_=sT[2],sT[3]
    p("s_cmp_ge_u32 %s, 3"%s(sKIND))
    p("s_cselect_b32 %s, 3456, 8192"%s(RS_)); p("s_cselect_b32 %s, 36, 64"%s(BS_))
    p("s_cselect_b32 %s, %d, %d"%(s(SRDW+2),D*3*D*2,D*4096*2))
    p("s_lshl_b32 %s, %s, 3"%(s(sT[0]),s(BS_))); p("s_mul_i32 %s, %s, %s"%(s(sWOFF),s(sN),s(sT[0])))
    p("s_lshl_b32 %s, %s, 3"%(s(sWSTEP),s(RS_)))
    p("s_mul_i32 %s, %s, %d"%(s(sXO),s(sM),256*1152))
    p("v_lshrrev_b32 %s, 5, v0"%v(t0)); p("s_lshl_b32 %s, %s, 1"%(s(sT[0]),s(sW))); p("v_add_u32 %s, %s, %s"%(v(t0),s(sT[0]),v(t0)))
    p("v_bfe_u32 %s, v0, 2, 3"%v(t1)); p("v_and_b32 %s, 3, %s"%(v(t2),v(t0))); p("v_xor_b32 %s, %s, %s"%(v(t1),v(t1),v(t2)))
    p("v_mul_lo_u32 %s, %s, %s"%(v(t0),v(t0),s(RS_))); p("v_mul_lo_u32 %s, %s, %s"%(v(t1),v(t1),s(BS_)))
    p("v_and_b32 %s, 3, v0"%v(t2)); p("v_lshlrev_b32 %s, 4, %s"%(v(t2),v(t2)))
    p("v_add3_u32 %s, %s, %s, %s"%(v(WD_),v(t0),v(t1),v(t2)))
    def dma(stg,k):
        base=(stg%NST)*STG
        for z in range(4):
            p("s_add_u32 %s, %s, %d"%(s(sT[0]),s(sXO),64*k+z*64*1152))
            p("s_add_u32 m0, %s, %d"%(s(sT[4]),base+z*4096))
            p("buffer_load_dwordx4 %s, %s, %s offen lds"%(v(XD_),s(SRDX,4),s(sT[0])),"d%d"%k)
        for z in range(4):
            p("s_add_u32 m0, %s, %d"%(s(sT[4]),base+16384+z*4096))
            p("buffer_load_dwordx4 %s, %s, %s offen lds"%(v(WD_),s(SRDW,4),s(sWOFF)),"d%d"%k)
            p("s_add_u32 %s, %s, %s"%(s(sWOFF),s(sWOFF),s(sWSTEP)))
    p("s_lshl_b32 %s, %s, 10"%(s(sT[4]),s(sW)))
    p("s_barrier")
    for k in range(3): dma(k,k)
    p("v_and_b32 %s, 31, v0"%v(t0))
    p("v_lshrrev_b32 %s, 1, %s"%(v(t1),v(t0))); p("v_xor_b32 %s, %s, %s"%(v(t1),v(t1),v(t0))); p("v_and_b32 %s, 8, %s"%(v(t1),v(t1)))
    p("v_mul_u32_u24 %s, 3, %s"%(v(t1),v(t1))); p("v_xor_b32 %s, %s, %s"%(v(t1),v(t1),v(t0)))
    p("s_cmp_eq_u32 %s, 1"%s(sKIND)); p("s_cselect_b64 vcc, -1, 0")
    p("v_cndmask_b32 %s, %s, %s, vcc"%(v(t0),v(t0),v(t1)))
    p("v_bfe_u32 %s, %s, 2, 2"%(v(t1),v(t0))); p("v_lshrrev_b32 %s, 5, v0"%v(t2)); p("v_xor_b32 %s, %s, %s"%(v(t1),v(t1),v(t2)))
    p("v_lshlrev_b32 %s, 4, %s"%(v(t1),v(t1))); p("v_lshl_add_u32 %s, %s, 6, %s"%(v(t0),v(t0),v(t1)))
    p("s_lshr_b32 %s, %s, 1"%(s(sT[0]),s(sW))); p("s_lshl_b32 %s, %s, 13"%(s(sT[0]),s(sT[0])))
    p("v_add_u32 %s, %s, %s"%(v(XR_),s(sT[0]),v(t0)))
    p("v_xor_b32 %s, 32, %s"%(v(EA),v(XR_)))
    p("v_and_b32 %s, 3, v0"%v(t0)); p("v_bfe_u32 %s, v0, 4, 1"%v(t1)); p("v_lshl_add_u32 %s, %s, 2, %s"%(v(t2),v(t1),v(t0)))
    p("v_lshrrev_b32 %s, 1, %s"%(v(t3),v(t0))); p("v_lshlrev_b32 %s, 2, %s"%(v(t3),v(t3))); p("v_lshl_add_u32 %s, %s, 1, %s"%(v(t3),v(t1),v(t3)))
    p("v_and_b32 %s, 1, %s"%(v(t0),v(t0))); p("v_add_u32 %s, %s, %s"%(v(t3),v(t3),v(t0)))
    p("s_and_b32 %s, %s, 5"%(s(sT[0]),s(sKIND))); p("s_cmp_eq_u32 %s, 0"%s(sT[0])); p("s_cselect_b64 vcc, -1, 0")
    p("v_cndmask_b32 %s, %s, %s, vcc"%(v(t2),v(t2),v(t3)))
    p("v_bfe_u32 %s, v0, 2, 2"%v(t0))
    p("v_lshrrev_b32 %s, 5, v0"%v(t1)); p("v_lshl_add_u32 %s, %s, 3, %s"%(v(t1),v(t1),v(t0)))
    p("v_lshlrev_b32 %s, 9, %s"%(v(t1),v(t1))); p("v_lshl_add_u32 %s, %s, 3, %s"%(v(t1),v(t2),v(t1)))
    p("v_lshl_add_u32 %s, %s, 6, %s"%(v(t1),v(t0),v(t1)))
    p("s_and_b32 %s, %s, 1"%(s(sT[0]),s(sW))); p("s_lshl_b32 %s, %s, 8"%(s(sT[0]),s(sT[0]))); p("s_add_u32 %s, %s, 16384"%(s(sT[0]),s(sT[0])))
    p("v_add_u32 %s, %s, %s"%(v(WR0),s(sT[0]),v(t1)))
    WR=[WR0,WR1,EB,TV[5]]
    for j in range(1,4): p("v_xor_b32 %s, %d, %s"%(v(WR[j]),64*j,v(WR0)))
    HI=[TV[0],TV[1],TV[2],TV[3],TV[4],2]
    for a_,b_ in zip(HI,[XR_,EA]+WR): p("v_add_u32 %s, 0x10000, %s"%(v(a_),v(b_)))
    def frags(stg,ks,set_):
        base=(stg%NST)*STG; hi=base>=65536; base&=0xffff
        xa=(HI[ks] if hi else (XR_,EA)[ks])
        for i in range(4): p("ds_read_b128 %s, %s offset:%d"%(acc(XOP[set_]+4*i,4),v(xa),base+2048*i),"f%d"%set_)
        for j in range(4):
            wa=HI[2+j] if hi else WR[j]
            for rho in range(2): p("ds_read_b64_tr_b16 %s, %s offset:%d"%(acc(WOP[set_]+4*j+2*rho,2),v(wa),base+8192*ks+2048*rho),"f%d"%set_)
    Lx=p.newlabel("GX"); Lep=p.newlabel("GE")
    p("s_cmp_eq_u32 %s, 1"%s(sKIND)); p("s_cbranch_scc1 %s"%Lx); p("s_cmp_eq_u32 %s, 5"%s(sKIND)); p("s_cbranch_scc1 %s"%Lx)
    snap=p.snapshot()
    def mainloop(xfirst):
        def mm(set_,first,pre):
            n=0
            for i in range(4):
                for j in range(4):
                    a_,b_=acc(XOP[set_]+4*i,4),acc(WOP[set_]+4*j,4)
                    if not xfirst: a_,b_=b_,a_
                    p("v_mfma_f32_32x32x16_bf16 %s, %s, %s, %s"%(accreg(i,j),a_,b_,"0" if first else accreg(i,j)))
                    if n==0 and pre: pre()
                    n+=1
        p.wait(vm="d0"); p("s_barrier"); frags(0,0,0)
        for k in range(18):
            p.wait(lg="f0")
            def pre0():
                frags(k,1,1)
            mm(0,k==0,pre0)
            p.wait(lg="f1")
            if k<17: p.wait(vm="d%d"%(k+1)); p("s_barrier")
            def pre1():
                if k<17: frags(k+1,0,0)
                if k+3<18: dma(k+3,k+3)
            mm(1,False,pre1)
    mainloop(False); p("s_branch %s"%Lep)
    p.label(Lx,reset=True); p.restore(snap); p.hist=[]
    mainloop(True)
    p.label(Lep)
    p("s_nop 15")
    n_,kh_=TV[0],TV[1]
    p("v_and_b32 %s, 31, v0"%v(n_)); p("v_lshrrev_b32 %s, 5, v0"%v(kh_))
    wm,wn=sT[5],sT[6]
    p("s_lshr_b32 %s, %s, 1"%(s(wm),s(sW))); p("s_and_b32 %s, %s, 1"%(s(wn),s(sW)))
    seg0=sT[7]
    p("s_lshl_b32 %s, %s, 3"%(s(seg0),s(sM))); p("s_lshl_b32 %s, %s, 2"%(s(sT[0]),s(wm))); p("s_add_u32 %s, %s, %s"%(s(seg0),s(seg0),s(sT[0])))
    p("s_mov_b32 %s, 0x3f800000"%s(sSC))
    p("s_cmp_eq_u32 %s, 0"%s(sKIND)); p("s_cselect_b32 %s, 0x%x, %s"%(s(sSC),f2u(CB),s(sSC)))
    p("s_cmp_eq_u32 %s, 3"%s(sKIND)); p("s_cselect_b32 %s, 0x%x, %s"%(s(sSC),f2u(CA),s(sSC)))
    p("s_mov_b32 %s, %s"%(s(sSC+1),s(sSC)))
    def pack(i,j,nreg,scale):
        n=4*i+j
        if n<15: r=16+16*n
        else:
            r=16
            for q in range(nreg): p("v_accvgpr_read_b32 %s, %s"%(v(r+q),acc(q)))
        if scale:
            for q in range(0,nreg,2): p("v_pk_mul_f32 %s, %s, %s"%(v(r+q,2),v(r+q,2),s(sSC,2)))
        for q in range(0,nreg,2): p("v_cvt_pk_bf16_f32 %s, %s, %s"%(v(r+q//2),v(r+q),v(r+q+1)))
        return r
    LA_=p.newlabel("EA"); Ldone=p.newlabel("ED"); FL=sT[8]
    p("s_cmp_ge_u32 %s, 3"%s(sKIND)); p("s_cbranch_scc1 %s"%LA_)
    p("s_lshl_b32 %s, %s, 1"%(s(sT[0]),s(sN))); p("s_add_u32 %s, %s, %s"%(s(sT[0]),s(sT[0]),s(wn)))
    p("s_cmp_eq_u32 %s, 2"%s(sKIND))
    p("s_cselect_b32 %s, %d, %d"%(s(sT[1]),QX_H,KV_H)); p("s_cselect_b32 %s, 8192, 16384"%s(sT[2])); p("s_cselect_b32 %s, 0x%x, 0x%x"%(s(sT[3]),WS_QX,WS_KV))
    p("s_cselect_b32 %s, %d, %d"%(s(FL),F_Q,F_KV)); p("s_add_u32 %s, %s, %s"%(s(FL),s(FL),s(sM)))
    p("s_mul_i32 %s, %s, %s"%(s(sT[0]),s(sT[0]),s(sT[1]))); p("s_mul_i32 %s, %s, %s"%(s(sT[1]),s(seg0),s(sT[2])))
    p("s_add_u32 %s, %s, %s"%(s(sT[0]),s(sT[0]),s(sT[1]))); p("s_add_u32 %s, %s, %s"%(s(sT[0]),s(sT[0]),s(sT[3])))
    p("s_cmp_eq_u32 %s, 1"%s(sKIND))
    p("s_cselect_b32 %s, 8192, 0"%s(sT[9]))
    p("s_cselect_b32 %s, 10, 12"%s(sT[1])); p("s_cselect_b32 %s, 2048, 1024"%s(sT[3]))
    p("s_add_u32 %s, %s, %s"%(s(sT[0]),s(sT[0]),s(sT[9])))
    add64s(p,sDST,sWS,sT[0])
    p("v_lshrrev_b32 %s, 4, %s"%(v(TV[2]),v(n_))); p("v_lshlrev_b32 %s, %s, %s"%(v(TV[2]),s(sT[1]),v(TV[2])))
    p("v_and_b32 %s, 15, v0"%v(TV[3])); p("v_lshl_add_u32 %s, %s, 4, %s"%(v(TV[3]),v(kh_),v(TV[3]))); p("v_lshl_add_u32 %s, %s, 4, %s"%(v(TV[2]),v(TV[3]),v(TV[2])))
    for j in range(1,4):
        p("v_add_u32 %s, %s, %s"%(v(TV[2]+j),s(sT[3]),v(TV[2]+j-1)))
    for i in range(4):
        for j in range(4):
            r=pack(i,j,16,True)
            for half in range(2): p("global_store_dwordx4 %s, %s, %s offset:%d%s"%(v(TV[2]+j),v(r+4*half,4),s(sDST,2),512*half,st),"st")
        if i<3: add64s(p,sDST,sDST,sT[2])
        p("s_waitcnt vmcnt(16)")
    p("s_branch %s"%Ldone)
    p.label(LA_,reset=True); p.vm=[]
    LAV=p.newlabel("EV")
    p("s_and_b32 %s, %s, 3"%(s(sT[0]),s(sN))); p("s_add_u32 %s, %s, %d"%(s(FL),s(sT[0]),F_A))
    p("s_lshl_b32 %s, %s, 3"%(s(sT[0]),s(sT[0]))); p("s_lshl_b32 %s, %s, 2"%(s(sT[1]),s(wn))); p("s_add_u32 %s, %s, %s"%(s(sT[9]),s(sT[0]),s(sT[1])))
    p("s_cmp_eq_u32 %s, 5"%s(sKIND)); p("s_cbranch_scc1 %s"%LAV)
    p("s_cmp_eq_u32 %s, 3"%s(sKIND))
    p("s_cselect_b32 %s, %d, %d"%(s(sT[1]),AQ_H,AKV_H)); p("s_cselect_b32 %s, 0x%x, 0x%x"%(s(sT[3]),WS_AQ,WS_AKV))
    p("s_cselect_b32 %s, 1152, 1024"%s(sT[2])); p("s_cselect_b32 %s, 1152, 128"%s(sT[10])); p("s_cselect_b32 %s, 1024, %d"%(s(sT[11]),AK1))
    p("s_mul_i32 %s, %s, %s"%(s(sT[0]),s(sT[9]),s(sT[1]))); p("s_add_u32 %s, %s, %s"%(s(sT[0]),s(sT[0]),s(sT[3]))); add64s(p,sDST,sWS,sT[0])
    p("s_mul_i32 %s, %s, %s"%(s(sT[12]),s(seg0),s(sT[2]))); p("s_mul_i32 %s, %s, %s"%(s(sT[13]),s(seg0),s(sT[10]))); p("s_add_u32 %s, %s, %s"%(s(sT[13]),s(sT[13]),s(sT[11])))
    p("v_lshlrev_b32 %s, 4, v0"%v(TV[2])); p("v_add_u32 %s, %s, %s"%(v(TV[2]),s(sT[12]),v(TV[2])))
    p("v_lshlrev_b32 %s, 2, %s"%(v(TV[3]),v(n_))); p("v_add_u32 %s, %s, %s"%(v(TV[3]),s(sT[13]),v(TV[3])))
    for j in range(4):
        p("v_mov_b32 %s, %s"%(v(TV[4]),v(TV[2]))); p("v_mov_b32 %s, %s"%(v(TV[5]),v(TV[3])))
        for i in range(4):
            r=pack(i,j,10,True)
            p("global_store_dwordx4 %s, %s, %s%s"%(v(TV[4]),v(r,4),s(sDST,2),st),"st")
            p("s_mov_b64 exec, 0xffffffff"); p("global_store_dword %s, %s, %s%s"%(v(TV[5]),v(r+4),s(sDST,2),st),"st"); p("s_mov_b64 exec, -1")
            if i<3: p("v_add_u32 %s, %s, %s"%(v(TV[4]),s(sT[2]),v(TV[4]))); p("v_add_u32 %s, %s, %s"%(v(TV[5]),s(sT[10]),v(TV[5])))
        if j<3: add64s(p,sDST,sDST,sT[1])
    p("s_branch %s"%Ldone)
    p.label(LAV,reset=True); p.vm=[]
    p("s_mul_i32 %s, %s, %d"%(s(sT[0]),s(sT[9]),AKV_H)); p("s_mul_i32 %s, %s, %d"%(s(sT[1]),s(seg0),AVT)); p("s_add_u32 %s, %s, %s"%(s(sT[0]),s(sT[0]),s(sT[1])))
    p("s_add_u32 %s, %s, 0x%x"%(s(sT[0]),s(sT[0]),WS_AKV+AV0)); add64s(p,sDST,sWS,sT[0])
    p("v_mul_u32_u24 %s, 304, %s"%(v(TV[2]),v(kh_))); p("v_lshl_add_u32 %s, %s, 4, %s"%(v(TV[2]),v(n_),v(TV[2])))
    p("v_add_u32 %s, %d, %s"%(v(TV[3]),2*AVT,v(TV[2])))
    p("s_mov_b32 %s, 0x3ffff"%s(sT[2])); p("s_mov_b32 %s, 0x3ffff"%s(sT[3]))
    for j in range(4):
        for i in range(4):
            r=pack(i,j,16,False)
            p("s_mov_b64 exec, %s"%s(sT[2],2))
            for ks in range(2): p("global_store_dwordx4 %s, %s, %s offset:%d%s"%(v(TV[2+i//2]),v(r+4*ks,4),s(sDST,2),(i%2)*AVT+608*ks,st),"st")
            p("s_mov_b64 exec, -1")
        if j<3: add64(p,sDST,sDST,AKV_H)
        p("s_waitcnt vmcnt(16)")
    p.label(Ldone,reset=True); p.vm=[]
    if "first_signal_hook" in cfg:
        Lh=p.newlabel("GH"); p("s_cmp_ge_u32 %s, %d"%(s(sTASK),nworkers)); p("s_cbranch_scc1 %s"%Lh)
        cfg["first_signal_hook"](p); p.label(Lh,reset=True)
    signal(p,FL,st)
    p("s_add_u32 %s, %s, %d"%(s(sTASK),s(sTASK),nworkers))
    p("s_branch %s"%Ltop)
```

```python
S=2048; D=576; H=32; DH=128; M=8; SEG=32; NSEG=64
WS_AG   = 0x0000000
WS_FLAG = 0x0010000
WS_RS   = 0x0100000
WS_STR  = 0x0200000
WS_M0   = 0x0300000
WS_KVM  = 0x0600000
WS_KV   = 0x1600000
WS_QX   = 0x3800000
WS_AQ   = 0x4800000
WS_AKV  = 0x4c00000
WS_OA   = 0x5200000
WS_END_CHAIN = 0x6800000
KV_H=65*16384; KV_S=16384; KVM_H=64*8192; KVM_S=8192; QX_H=64*8192
AQ_H=64*1152; AKV_H=151552; AK1=65536; AV0=73728; AVT=1216
OA_M=292*1024
F_KV=0
F_Q=8
F_A=16
F_OA=32
F_KM=97
F_OB=161
NFLAG=225
STAGES = [(8,0,1),(2,3,4),(5,6,7)]
def ocol(w,tau,c): return 64*tau+16*w+c
def dcol(kap,gA,i,t,b):
    sg,u = divmod(kap,3)
    c_,a_,b_ = STAGES[sg]
    if u==0: return ocol(gA,c_,8*t+2*i+b)
    return ocol(gA,(b_ if b else a_),8*t+4*(u-1)+i)
assert sorted(dcol(k,g,i,t,b) for k in range(9) for g in range(4) for i in range(4) for t in range(2) for b in range(2))==list(range(576))
```

```python
import re

TRANS = ("v_exp_f32","v_log_f32","v_rcp_f32","v_rsq_f32","v_sqrt_f32","v_sin_f32","v_cos_f32","v_rcp_iflag_f32")
REG_RE = re.compile(r"^(-?)(\|?)(abs\()?([vas])(\d+|\[\d+:\d+\])\)?\|?$")

def regs_of(tok):
    tok = tok.strip()
    if tok in ("vcc",): return [("vcc",0)]
    if tok in ("vcc_lo","vcc_hi"): return [("vcc",0)]
    if tok in ("exec","exec_lo","exec_hi"): return [("exec",0)]
    if tok == "m0": return [("m0",0)]
    m = REG_RE.match(tok)
    if not m: return []
    k, r = m.group(4), m.group(5)
    if r[0] == "[":
        lo, hi = r[1:-1].split(":")
        return [(k,i) for i in range(int(lo), int(hi)+1)]
    return [(k,int(r))]

class Ins:
    __slots__=("text","op","rd","wr","kind","passes","srcc","srcab","dpp","tag","lds_dma","wide_store","data","note")
    def __init__(self, text, tag=None):
        self.text = text; self.tag = tag
        t = text.split(";")[0].strip()
        parts = t.split(None,1)
        op = parts[0]; self.op = op
        rest = parts[1] if len(parts)>1 else ""
        toks = [x.strip() for x in rest.split(",")] if rest else []
        mods = ""
        if toks:
            sp = toks[-1].split(None,1)
            toks[-1] = sp[0]
            mods = sp[1] if len(sp)>1 else ""
        self.rd=set(); self.wr=set(); self.passes=0; self.srcc=set(); self.srcab=set()
        self.dpp = ("_dpp" in op) or ("quad_perm" in mods) or ("row_" in mods)
        self.lds_dma=False; self.wide_store=False; self.data=set()
        R = lambda i: set(regs_of(toks[i])) if i < len(toks) else set()
        if op.startswith("v_mfma") or op.startswith("v_smfmac"):
            self.kind="mfma"
            self.passes = 8 if "32x32" in op else (2 if "4x4x4" in op else 4)
            self.wr = R(0); self.srcab = R(1)|R(2)
            if op.startswith("v_smfmac"):
                self.srcc = R(0); self.srcab |= R(3)
            else:
                self.srcc = R(3)
            self.rd = self.srcab|self.srcc
        elif op.startswith("v_cmp"):
            self.kind="valu"; self.wr=R(0); self.rd=R(1)|R(2)
            if op.startswith("v_cmpx"): self.wr.add(("exec",0))
        elif op.startswith("v_readfirstlane") or op.startswith("v_readlane"):
            self.kind="valu"; self.wr=R(0); self.rd=R(1)|R(2)
        elif op.startswith("v_permlane") :
            self.kind="valu"; self.wr=R(0)|R(1); self.rd=R(0)|R(1)
        elif op.startswith("v_"):
            self.kind="valu"; self.wr=R(0)
            st=1
            if op.startswith(("v_add_co","v_sub_co","v_addc_co","v_subb_co","v_subrev_co","v_mad_u64","v_div_scale")):
                self.wr|=R(1); st=2
            for i in range(st,len(toks)): self.rd|=R(i)
            if op.startswith(("v_fmac","v_dot2c","v_writelane","v_pk_fmac")) or self.dpp: self.rd|=R(0)
            if op.startswith("v_cndmask") and len(toks)==3: self.rd.add(("vcc",0))
        elif op.startswith("ds_read") or op.startswith("ds_bpermute") or op.startswith("ds_permute") or op.startswith("ds_swizzle"):
            self.kind="ds"; self.wr=R(0)
            for i in range(1,len(toks)): self.rd|=R(i)
        elif op.startswith("ds_"):
            self.kind="ds"
            for i in range(len(toks)): self.rd|=R(i)
        elif op.startswith("global_load_lds"):
            self.kind="vmem"; self.lds_dma=True
            for i in range(len(toks)): self.rd|=R(i)
            self.rd.add(("m0",0))
        elif op.startswith("buffer_load") and " lds" in (" "+mods+" "+t):
            self.kind="vmem"; self.lds_dma=True
            for i in range(len(toks)): self.rd|=R(i)
            self.rd.add(("m0",0))
        elif op.startswith("global_load") or op.startswith("buffer_load"):
            self.kind="vmem"; self.wr=R(0)
            for i in range(1,len(toks)): self.rd|=R(i)
        elif op.startswith("global_store"):
            self.kind="vmem"
            for i in range(len(toks)): self.rd|=R(i)
            self.data=R(1); self.wide_store = op.endswith("x3") or op.endswith("x4")
        elif op.startswith("buffer_store"):
            self.kind="vmem"
            for i in range(len(toks)): self.rd|=R(i)
            self.data=R(0); self.wide_store = op.endswith("x3") or op.endswith("x4")
        elif op.startswith("global_atomic"):
            self.kind="vmem"
            if "sc0" in mods:
                self.wr=R(0)
                for i in range(1,len(toks)): self.rd|=R(i)
            else:
                for i in range(len(toks)): self.rd|=R(i)
        elif op.startswith("buffer_wbl2") or op.startswith("buffer_inv"):
            self.kind="vmem"
        elif op.startswith("s_load") or op.startswith("s_buffer_load") or op.startswith("s_memtime") or op.startswith("s_memrealtime") or op.startswith("s_atomic"):
            self.kind="smem"; self.wr=R(0)
            for i in range(1,len(toks)): self.rd|=R(i)
        elif op in ("s_waitcnt","s_nop","s_barrier","s_endpgm","s_branch","s_setprio","s_sleep") or op.startswith("s_cbranch"):
            self.kind="ctl"
            if "vcc" in op: self.rd.add(("vcc",0))
            if "exec" in op: self.rd.add(("exec",0))
        elif op.startswith("s_cmp") or op.startswith("s_bitcmp"):
            self.kind="salu"
            for i in range(len(toks)): self.rd|=R(i)
        elif op.startswith("s_"):
            self.kind="salu"; self.wr=R(0)
            for i in range(1,len(toks)): self.rd|=R(i)
            if "saveexec" in op: self.wr.add(("exec",0)); self.rd.add(("exec",0))
            if op.startswith(("s_addk","s_mulk","s_cmovk","s_cmov","s_bitset")): self.rd|=R(0)
        else:
            raise ValueError("unknown op: "+text)
    def states(self):
        if self.op=="s_nop":
            return int(self.text.split()[1],0)+1
        return 1

def isv(r): return r[0] in ("v","a")
def iss(r): return r[0] in ("s","vcc")

def need(p, c):
    n=0
    if p.kind=="valu":
        vw={r for r in p.wr if isv(r)}; sw={r for r in p.wr if iss(r)}
        if c.kind=="mfma" and vw & c.rd: n=max(n,2)
        if c.kind=="valu":
            if c.dpp and vw & c.rd: n=max(n,2)
            if c.op.startswith("v_permlane") and vw & c.rd: n=max(n,2)
            if c.op.startswith(("v_readlane","v_readfirstlane")) and vw & c.rd: n=max(n,1)
            if c.op.startswith(("v_readlane","v_writelane")) and sw & c.rd: n=max(n,4)
            if sw & c.rd: n=max(n,2)
            if p.op.replace("_e32","").replace("_e64","") in TRANS and vw & c.rd and c.op.replace("_e32","").replace("_e64","") not in TRANS: n=max(n,1)
            if ("exec",0) in p.wr:
                if c.dpp: n=max(n,5)
                if c.op.startswith(("v_readlane","v_readfirstlane","v_writelane","v_permlane")): n=max(n,4)
        if c.kind=="vmem" and sw & c.rd: n=max(n,5)
        if c.kind=="mfma" and ("exec",0) in p.wr: n=max(n,4)
        if c.kind in("salu","smem") and sw & c.rd: n=max(n,1)
    if p.kind=="mfma":
        ps=p.passes
        if c.kind=="mfma":
            if p.wr & c.srcab: n=max(n,{2:5,4:8,8:12,16:20}[ps])
            if p.wr & c.srcc:
                if p.wr==c.srcc and c.op==p.op: n=max(n,2 if ps==2 else 0)
                else: n=max(n,{2:4,4:6,8:10,16:18}[ps])
            elif p.wr & c.wr: n=max(n,{2:4,4:6,8:10,16:18}[ps])
        elif c.kind in("valu","vmem","ds"):
            if p.wr & (c.rd|c.wr): n=max(n,{2:5,4:8,8:12,16:20}[ps])
            if c.kind=="valu" and (p.srcc & c.wr): n=max(n,{2:1,4:3,8:7,16:15}[ps])
    if p.kind=="salu" and ("m0",0) in p.wr and c.lds_dma: n=max(n,1)
    if p.kind=="vmem" and p.wide_store and (p.data & c.wr):
        n=max(n,2 if c.kind=="valu" else 1)
    return n

class Prog:
    def __init__(self):
        self.items=[]
        self.vm=[]
        self.lg=[]
        self.hist=[]
        self.nlab=0
        self.check=True
        self.nops=0
    def newlabel(self, base="L"):
        self.nlab+=1; return "%s%s_%d"%(base,getattr(self,"lab_sfx",""),self.nlab)
    def raw(self, s):
        self.items.append(s)
    def label(self, name, reset=False):
        self.items.append(name+":")
        if reset: self.hist=[]
    def barrier_state(self):
        self.hist=[]
    def snapshot(self): return (list(self.vm), list(self.lg), list(self.hist))
    def restore(self, s): self.vm, self.lg, self.hist = list(s[0]), list(s[1]), list(s[2])
    def __call__(self, text, tag=None):
        for line in text.split("\n"):
            line=line.strip()
            if not line or line.startswith(";"): continue
            if line.endswith(":") : self.label(line[:-1]); continue
            if line.startswith("."): self.raw(line); continue
            m=re.match(r"s_cselect_b32 (\w+), (\w+), (\w+)$",line)
            if m and all(re.match(r"^(0x[0-9a-f]+|\d+)$",x) and int(x,0)>64 for x in m.group(2,3)) and m.group(2)!=m.group(3):
                self.emit(Ins("s_mov_b32 %s, %s"%(m.group(1),m.group(3)),tag)); line="s_cselect_b32 %s, %s, %s"%(m.group(1),m.group(2),m.group(1))
            self.emit(Ins(line, tag))
    def emit(self, ins):
        dist=0; req=0
        for p in reversed(self.hist):
            nn=need(p,ins)
            if nn>dist: req=max(req, nn-dist)
            dist+=p.states()
            if dist>=20: break
        if req>0:
            self.nops+=req
            while req>0:
                k=min(req,16); nop=Ins("s_nop %d"%(k-1)); self.items.append(nop); self.hist.append(nop); req-=k
        if ins.op=="s_waitcnt":
            m=re.search(r"vmcnt\((\d+)\)",ins.text)
            if m:
                n=int(m.group(1))
                real=lambda: sum(1 for e in self.vm if not (len(e)>2 and e[2]=="pseudo"))
                while real()>n: self.vm.pop(0)
                while self.vm and len(self.vm[0])>2 and self.vm[0][2]=="pseudo" and real()<=n and sum(1 for e in self.vm[1:] if not (len(e)>2 and e[2]=="pseudo"))>=n: self.vm.pop(0)
            m=re.search(r"lgkmcnt\((\d+)\)",ins.text)
            if m:
                n=int(m.group(1))
                if n>0 and any(x[2] for x in self.lg) and self.check: raise ValueError("counted lgkmcnt with SMEM outstanding")
                while len(self.lg)>n: self.lg.pop(0)
        elif self.check:
            touched=ins.rd|ins.wr
            for q,nm in ((self.vm,"vm"),(self.lg,"lgkm")):
                for e in q:
                    bad = touched & e[1]
                    if bad: raise ValueError("pending %s load (tag %s) into %s touched by: %s"%(nm,e[0],sorted(bad),ins.text))
        if ins.kind=="vmem":
            self.vm.append((ins.tag,set(ins.wr)))
            if len(self.vm)>63 and self.check: raise ValueError("vmcnt overflow")
        elif ins.kind=="ds": self.lg.append((ins.tag,set(ins.wr),False))
        elif ins.kind=="smem": self.lg.append((ins.tag,set(ins.wr),True))
        self.items.append(ins); self.hist.append(ins)
        if len(self.hist)>40: self.hist=self.hist[-40:]
    def wait(self, vm=None, lg=None):
        parts=[]
        def count(q,tags,cap):
            if tags=="all": return 0 if q else None
            if isinstance(tags,str): tags=[tags]
            last=-1
            for i,e in enumerate(q):
                if e[0] in tags: last=i
            if last<0: return None
            n=sum(1 for e in q[last+1:] if not (len(e)>2 and e[2]=="pseudo"))
            self._cut=(q,last)
            return min(n,cap)
        if vm is not None:
            n=count(self.vm,vm,63)
            if n is not None: parts.append("vmcnt(%d)"%n)
        if lg is not None:
            n=count(self.lg,lg,15)
            if n is not None:
                if any(x[2] for x in self.lg): n=0
                parts.append("lgkmcnt(%d)"%n)
        if parts: self("s_waitcnt "+" ".join(parts))
    def text(self):
        out=[]
        for it in self.items:
            out.append(it if isinstance(it,str) else it.text.replace(" offset:0",""))
        return "\n".join(out)+"\n"

def v(i,n=1): return "v%d"%i if n==1 else "v[%d:%d]"%(i,i+n-1)
def acc(i,n=1): return "a%d"%i if n==1 else "a[%d:%d]"%(i,i+n-1)
def s(i,n=1): return "s%d"%i if n==1 else "s[%d:%d]"%(i,i+n-1)
def ur(i,n=1):
    return v(i,n) if i<256 else acc(i-256,n)
```

```python
from prog import *
from chain import *
NWG=256
def role_select(p, L_chain, L_worker, L_exit, force_slow=False, sWORK=18):
    p("s_cmp_ge_u32 s2, %d"%NWG); p("s_cbranch_scc1 %s"%L_exit)
    p("s_load_dwordx2 %s, s[0:1], 96"%s(sDBG,2)); p("s_load_dwordx2 %s, s[0:1], 104"%s(sWS,2))
    p("s_load_dwordx4 s[4:7], s[0:1], 40"); p("s_load_dwordx4 s[8:11], s[0:1], 56"); p("s_load_dwordx2 %s, s[0:1], 32"%s(sMEM0,2))
    p("s_getreg_b32 %s, hwreg(HW_REG_XCC_ID, 0, 4)"%s(sT0))
    p("v_lshrrev_b32 v1, 6, v0"); p("v_readfirstlane_b32 %s, v1"%s(sW))
    p("s_waitcnt lgkmcnt(0)")
    Lb=p.newlabel("RB"); Lw=p.newlabel("RW"); Ld=p.newlabel("RD")
    p("v_mov_b32 v2, 0")
    p("s_cmp_lg_u32 %s, 0"%s(sW)); p("s_cbranch_scc1 %s"%Lb)
    p("s_mov_b64 exec, 1"); p("v_mov_b32 v3, 1")
    if force_slow:
        p("s_and_b32 %s, s2, 7"%s(sT1)); p("s_lshr_b32 %s, s2, 3"%s(sT0)); p("s_xor_b32 %s, %s, %s"%(s(sT0),s(sT0),s(sT1))); p("s_and_b32 %s, %s, 15"%(s(sT0),s(sT0)))
    p("s_cmp_lg_u32 %s, 0"%s(sT0)); p("s_cbranch_scc1 %s"%Lw)
    p("global_atomic_add v4, v2, v3, %s sc0"%s(sDBG,2),"t"); p.wait(vm="t")
    p("v_readfirstlane_b32 %s, v4"%s(sT1))
    p("s_cmp_lt_u32 %s, 32"%s(sT1)); p("s_cbranch_scc1 %s"%Ld)
    p.label(Lw)
    p("global_atomic_add v4, v2, v3, %s offset:128 sc0"%s(sDBG,2),"t"); p.wait(vm="t")
    p("v_readfirstlane_b32 %s, v4"%s(sT1))
    p("v_add_u32 v4, 32, v4")
    p("s_cmp_lt_u32 %s, %d"%(s(sT1),NWG-32)); p("s_cbranch_scc1 %s"%Ld)
    p("v_sub_u32 v4, %d, v4"%(31+NWG))
    p("global_atomic_add v2, v3, %s offset:8"%s(sDBG,2),"t"); p.wait(vm="t")
    p.label(Ld)
    p("ds_write_b32 v2, v4","b"); p.wait(lg="b"); p("s_mov_b64 exec, -1")
    p.label(Lb)
    p("s_barrier")
    p("ds_read_b32 v4, v2","b"); p.wait(lg="b")
    p("v_readfirstlane_b32 %s, v4"%s(sH))
    p("s_barrier")
    p("s_cmp_lt_u32 %s, 32"%s(sH)); p("s_cbranch_scc1 %s"%L_chain)
    p("s_sub_u32 %s, %s, 32"%(s(sH),s(sH)))
    p("s_branch %s"%L_worker)
```

```python
import sys, json; sys.path.insert(0,"gen")
from asmlib import kernel_head, kernel_desc, build
from prog import *
from layout import *
import chain, roles, gemm, attn
NAME="gated_mix__softmax_full_mha__memory_aug_recurrent_mem_tr__prompt"
NT5=64; NTEAM=4
def poll_word(p,base_pair,off,count,abort,vt,sT0,sB,sleep=4):
    L=p.newlabel("PW"); G=p.newlabel("PG")
    p("v_mov_b32 %s, 0x%x"%(v(vt),off))
    p.label(L)
    p("global_load_dword %s, %s, %s sc1"%(v(vt+1),v(vt),s(base_pair,2))); p("s_waitcnt vmcnt(0)")
    p("v_readfirstlane_b32 %s, %s"%(s(sT0),v(vt+1)))
    p("s_cmp_ge_u32 %s, %d"%(s(sT0),count)); p("s_cbranch_scc1 %s"%G)
    p("s_sub_u32 %s, %s, 1"%(s(sB),s(sB))); p("s_cbranch_scc1 %s"%abort)
    p("s_sleep %d"%sleep); p("s_branch %s"%L)
    p.label(G)
def gen(out,ccfg=None,force_slow=False,diag=False):
    p=Prog(); name=NAME+"_kernel"
    hdr=[l for l in open("cdna_kernels/%s.s.ref"%NAME).read().split("\n") if l.startswith(";") and "@launch" not in l and "Override" not in l and "grid=ceil" not in l]
    for l in hdr: p.raw(l)
    p.raw("; @launch grid=(256,1,1) block=(256,1,1) lds=163840")
    p.raw('.amdgcn_target "amdgcn-amd-amdhsa--gfx950"'); p.raw(kernel_head(name))
    roles.role_select(p,"CHAIN","WORKER","EXIT0",force_slow=force_slow)
    p.label("EXIT0",reset=True); p("s_endpgm")
    from gemm import sIDX,sW,sWS,sDBG,sBUD,sWOA,sGW,sOUT,sT
    p.label("WORKER",reset=True); p.vm=[]; p.lg=[]
    p("s_load_dwordx4 s[20:23], s[0:1], 0"); p("s_load_dwordx2 %s, s[0:1], 16"%s(sWOA,2)); p("s_load_dwordx4 s[36:39], s[0:1], 80")
    p("s_mov_b32 %s, 0x800000"%s(sBUD)); p("s_waitcnt lgkmcnt(0)")
    p("s_mov_b64 %s, s[36:37]"%s(sGW,2)); p("s_mov_b64 %s, s[38:39]"%s(sOUT,2))
    if diag: p("s_memrealtime s[90:91]"); p("s_waitcnt lgkmcnt(0)")
    Lni=p.newlabel("NI")
    p("s_cmp_lg_u32 %s, 0"%s(sIDX)); p("s_cbranch_scc1 %s"%Lni)
    p("v_lshlrev_b32 v2, 7, v0"); p("v_add_u32 v2, 0x%x, v2"%WS_FLAG); p("v_mov_b32 v3, 0")
    p("global_store_dword v2, v3, %s sc1"%s(sWS,2)); p("s_waitcnt vmcnt(0)"); p("s_barrier")
    p("s_mov_b64 exec, 1"); p("v_mov_b32 v2, 132"); p("v_mov_b32 v3, 1"); p("global_atomic_add v2, v3, %s"%s(sDBG,2)); p("s_mov_b64 exec, -1")
    p.label(Lni,reset=True); p.vm=[]
    p("v_and_b32 v0, 63, v0")
    cfg={"first_signal_hook":lambda p: poll_word(p,sDBG,132,4,"EXIT1",2,sT[1],sBUD)}
    def stamp(i):
        if not diag: return
        p("s_memrealtime s[92:93]"); p("s_waitcnt lgkmcnt(0)"); p("s_sub_u32 s92, s92, s90")
        p("s_lshl_b32 s93, %s, 4"%s(sIDX)); p("s_add_u32 s93, s93, 0x%x"%(WS_END_CHAIN+0x200000+4*i)); p("v_mov_b32 v2, s93"); p("v_mov_b32 v3, s92")
        p("global_store_dword v2, v3, %s"%s(sWS,2)); p("s_waitcnt vmcnt(0)")
    gemm.gemm_tasks(p,cfg,224,"W1","EXIT1")
    p.label("W1",reset=True); p.vm=[]; p.lg=[]; stamp(0)
    attn.attn_a(p,{},"W2","EXIT1")
    p.label("W2",reset=True); p.vm=[]; p.lg=[]; stamp(1)
    p("s_cmp_ge_u32 %s, %d"%(s(sIDX),18*NTEAM)); p("s_cbranch_scc1 W5")
    p("s_mov_b32 s80, %s"%s(sIDX)); attn.final_proj(p,{},80,NTEAM,"W3","EXIT1")
    p.label("W5",reset=True); p.vm=[]; p.lg=[]
    p("s_sub_u32 s80, %s, %d"%(s(sIDX),18*NTEAM)); p("s_cmp_ge_u32 s80, %d"%NT5); p("s_cbranch_scc1 W3")
    attn.attn_b(p,{},80,NT5,"W3","EXIT1")
    p.label("W3",reset=True); p.vm=[]; p.lg=[]; stamp(2)
    p.label("EXIT1",reset=True); p("s_endpgm")
    from chain import sT0,sFKM,XD,PM,ZERO,sSTAMP,sSTP,sCA,sCR,add64,add64s
    sB=chain.sBUD
    p.label("CHAIN",reset=True); p.vm=[]; p.lg=[]
    def hook_first(p):
        chk=p.check; p.check=False; q=list(p.vm)
        poll_word(p,sDBG,132,4,"EXIT2",XD,sT0,sB)
        for m in range(7): poll_word(p,sWS,WS_FLAG+128*(F_KV+m),32,"EXIT2",XD,sT0,sB)
        p.check=chk
    def hook_late(p):
        p("s_waitcnt lgkmcnt(0)")
        poll_word(p,sWS,WS_FLAG+128*(F_KV+7),32,"EXIT2",XD,sT0,sB)
    cfg=dict(abort="EXIT2",done="DONE",pub_mod=" sc1",signal=1,next0=40,hook_first_kv=hook_first,hook_late=hook_late,budget=1<<21,
             entries={(sl,w):"CE%d%d"%(sl,w) for sl in range(2) for w in range(4)},
             da=[60,60],dma2=4,rst_s=2,pfs=[[24,31,42,55],[26,33,46,57],[28,35,47,59],[30,40,49,60]])
    cfg.update(ccfg or {})
    if diag:
        cfg["endstamp"]=1
        p("s_memrealtime s[88:89]"); p("s_waitcnt lgkmcnt(0)")
    chain.prologue(p,cfg)
    p.label("EXIT2",reset=True); p("s_endpgm")
    p.label("DONE",reset=True); p.vm=[]; p.lg=[]
    p("s_waitcnt vmcnt(0) lgkmcnt(0)"); p("s_barrier")
    p("s_cmp_lg_u32 %s, 3"%s(sW)); p("s_cbranch_scc1 EXIT2")
    p("v_mov_b32 %s, %s"%(v(XD),s(sFKM))); p("v_mov_b32 %s, 1"%v(XD+1)); p("s_mov_b64 exec, 1")
    p("global_atomic_add %s, %s, %s"%(v(XD),v(XD+1),s(sWS,2)))
    if diag:
        p("s_memtime s[58:59]"); p("s_memrealtime s[92:93]"); p("s_waitcnt lgkmcnt(0)")
        p("s_sub_u32 s58, s58, s94"); p("s_sub_u32 s92, s92, s88"); p("s_sub_u32 s90, s90, s88")
        p("v_mov_b32 v16, s58"); p("v_mov_b32 v17, s92"); p("v_mov_b32 v18, s90"); p("v_mov_b32 v19, %s"%s(sCA))
        p("s_lshl_b32 s93, s18, 4"); p("s_add_u32 s93, s93, 0x%x"%(WS_END_CHAIN+0x210000)); p("v_mov_b32 v20, s93")
        p("global_store_dwordx4 v20, v[16:19], %s"%s(sWS,2))
    p("s_endpgm")
    chain.loops(p,cfg)
    p.raw(kernel_desc(name,vgpr=512,sgpr=96,accum=256))
    build(p.text(),name,14,out)
    print("nops",p.nops,"lines",len(p.items),"bytes",len(p.text()))
if __name__=="__main__":
    gen("full"); gen("full_diag",diag=True); gen("full_slow",force_slow=True,diag=True)
    import shutil; shutil.copy("full.s","cdna_kernels/%s.s"%NAME)
```

```python
from prog import *
from layout import *
from gemm import *
LO=(127-30)<<23; RNG=65<<23
def m32(p,d,a,b,c): p("v_mfma_f32_32x32x16_bf16 %s, %s, %s, %s"%(v(d,16),a,b,c))
def m16(p,d,a,b,c=None): p("v_mfma_f32_16x16x32_bf16 %s, %s, %s, %s"%(v(d,4),v(a,4),v(b,4),"0" if c is None else v(c,4)))
def m16k(p,d,a,b,c): p("v_mfma_f32_16x16x16_bf16 %s, %s, %s, %s"%(v(d,4),v(a,2),v(b,2),v(c,4)))
def divmod_const(p,q,r,x,dv,tmp):
    p("s_mul_hi_u32 %s, %s, 0x%x"%(s(q),s(x),(2**32+dv-1)//dv)); p("s_mul_i32 %s, %s, %d"%(s(tmp),s(q),dv)); p("s_sub_u32 %s, %s, %s"%(s(r),s(x),s(tmp)))

def attn_a(p,cfg,Lnext,abort):
    st=cfg.get("st"," sc1")
    sH_,sBLK,sRND,sFL,sCNT,sSLOW=56,57,58,59,60,61
    sP=62; sQ=64
    divmod_const(p,sH_,sBLK,sIDX,7,sT[0])
    p("s_lshl_b32 %s, %s, 2"%(s(sBLK),s(sBLK))); p("s_add_u32 %s, %s, %s"%(s(sBLK),s(sBLK),s(sW)))
    p("s_lshr_b32 %s, %s, 3"%(s(sFL),s(sH_))); p("s_add_u32 %s, %s, %d"%(s(sFL),s(sFL),F_A))
    wait_flag(p,sFL,48,abort,2)
    L16,KA,K1A,VA,QN=1,4,5,6,7
    p("v_lshlrev_b32 %s, 4, v0"%v(L16))
    p("s_mul_i32 %s, %s, %d"%(s(sT[0]),s(sH_),AKV_H)); p("s_mul_i32 %s, %s, %d"%(s(sT[1]),s(sW),37*1024)); p("s_add_u32 %s, %s, %s"%(s(sT[0]),s(sT[0]),s(sT[1])))
    p("s_add_u32 %s, %s, 0x%x"%(s(sT[0]),s(sT[0]),WS_AKV)); add64s(p,sP,sWS,sT[0])
    p("s_barrier")
    for i in range(37):
        if i%4==0:
            p("s_add_u32 m0, %s, %d"%(s(sT[1]),1024*i))
            if i: add64(p,sP,sP,4096)
            p("s_nop 0")
        p("global_load_lds_dwordx4 %s, %s offset:%d sc1"%(v(L16),s(sP,2),1024*(i%4)),"kv")
    p("s_lshl_b32 %s, %s, 6"%(s(sT[0]),s(sW))); p("v_add_u32 v2, %s, v0"%s(sT[0])); p("v_mul_u32_u24 v2, 304, v2"); p("v_add_u32 v2, %d, v2"%(AV0+288))
    for i in range(4): p("v_mov_b32 %s, 0x3f803f80"%v(8+i))
    p("v_and_b32 %s, 31, v0"%v(QN)); p("v_lshlrev_b32 %s, 2, %s"%(v(QN),v(QN)))
    p.wait(vm="all"); p("s_barrier")
    p("ds_write_b128 v2, v[8:11]","o"); p.wait(lg="all"); p("s_barrier")
    Q0,Q1,K0,K1,V0,V1=8,12,[16,32],[20,36],[24,40],[28,44]
    SA,SB,PP,O,NM=48,64,80,96,112
    for i in range(1,4): p("v_mov_b32 %s, 0"%v(Q1+i)); p("v_mov_b32 %s, 0"%v(K1[0]+i)); p("v_mov_b32 %s, 0"%v(K1[1]+i))
    p("s_mov_b32 %s, 0"%s(sRND))
    Lr,Lsk,Lrun,Lp,Lok=p.newlabel("AR"),p.newlabel("AS"),p.newlabel("AU"),p.newlabel("AL"),p.newlabel("AO")
    p.label(Lr,reset=True)
    p("s_cmp_ge_u32 %s, 64"%s(sBLK)); p("s_cbranch_scc1 %s"%Lsk)
    p("s_mul_i32 %s, %s, %d"%(s(sT[0]),s(sH_),AQ_H)); p("s_mul_i32 %s, %s, 1152"%(s(sT[1]),s(sBLK))); p("s_add_u32 %s, %s, %s"%(s(sT[0]),s(sT[0]),s(sT[1])))
    p("s_add_u32 %s, %s, 0x%x"%(s(sT[0]),s(sT[0]),WS_AQ)); add64s(p,sQ,sWS,sT[0])
    p("global_load_dwordx4 %s, %s, %s sc1"%(v(Q0,4),v(L16),s(sQ,2)),"q"); p("global_load_dword %s, %s, %s offset:1024 sc1"%(v(Q1),v(QN),s(sQ,2)),"q")
    for i in range(0,16,2): p("v_mov_b64 %s, 0"%v(NM+i,2))
    p("s_mov_b32 %s, 0"%s(sSLOW))
    p.wait(vm="q")
    p("s_mov_b64 exec, 0xffffffff"); p("s_not_b64 exec, exec"); p("v_mov_b32 %s, 0"%v(Q1)); p("s_mov_b64 exec, -1")
    def addr():
        p("v_mov_b32 %s, %s"%(v(KA),v(L16))); p("v_add_u32 %s, %d, %s"%(v(K1A),AK1,v(QN)))
        p("v_and_b32 v2, 31, v0"); p("v_min_u32 v2, 18, v2"); p("v_lshrrev_b32 v3, 5, v0"); p("v_mul_u32_u24 v3, 304, v3")
        p("v_lshl_add_u32 v2, v2, 4, v3"); p("v_add_u32 %s, %d, v2"%(v(VA),AV0))
    def rk(b,t): p("ds_read_b128 %s, %s offset:%d"%(v(K0[b],4),v(KA),1024*t),"k%d"%b); p("ds_read_b32 %s, %s offset:%d"%(v(K1[b]),v(K1A),128*t),"k%d"%b)
    def rv(b,t): p("ds_read_b128 %s, %s offset:%d"%(v(V0[b],4),v(VA),AVT*t),"v%d"%b); p("ds_read_b128 %s, %s offset:%d"%(v(V1[b],4),v(VA),AVT*t+608),"v%d"%b)
    p.label(Lrun,reset=True)
    addr()
    for i in range(0,16,2): p("v_mov_b64 %s, 0"%v(O+i,2))
    rk(0,0); rk(1,1); rv(0,0)
    p.wait(lg="k0"); m32(p,SA,v(K0[0],4),v(Q0,4),v(NM,16)); m32(p,SA,v(K1[0],4),v(Q1,4),v(SA,16))
    rk(0,2)
    p("s_mov_b32 %s, 32"%s(sCNT)); p("s_nop 7")
    E=lambda r: p("v_exp_f32 %s, %s"%(v(r),v(r)))
    C=lambda d,a: p("v_cvt_pk_bf16_f32 %s, %s, %s"%(v(d),v(a),v(a+1)))
    def tile(cur,nxt,b,t):
        nb=1-b
        p.wait(lg="k%d"%nb); m32(p,nxt,v(K0[nb],4),v(Q0,4),v(NM,16)); rv(nb,t+1)
        for i in range(4): E(cur+i)
        m32(p,nxt,v(K1[nb],4),v(Q1,4),v(nxt,16)); rk(nb,t+3)
        for i in range(4,8): E(cur+i)
        for i in range(4): C(PP+i,cur+2*i)
        E(cur+8)
        p.wait(lg="v%d"%b); m32(p,O,v(V0[b],4),v(PP,4),v(O,16))
        for i in range(9,16): E(cur+i)
        for i in range(4,8): C(PP+i,cur+2*i)
        p("s_nop 0")
        m32(p,O,v(V1[b],4),v(PP+4,4),v(O,16))
    keep=len(p.items)
    for rep in range(2):
        if rep==1: del p.items[keep:]; p.raw(".p2align 6"); p.label(Lp)
        tile(SA,SB,0,0); tile(SB,SA,1,1)
        p("v_add_u32 %s, 2048, %s"%(v(KA),v(KA))); p("v_add_u32 %s, 256, %s"%(v(K1A),v(K1A))); p("v_add_u32 %s, %d, %s"%(v(VA),2*AVT,v(VA)))
        p("s_sub_u32 %s, %s, 1"%(s(sCNT),s(sCNT))); p("s_cmp_lg_u32 %s, 0"%s(sCNT)); p("s_cbranch_scc1 %s"%Lp)
    p.wait(lg="all"); p("s_nop 15")
    p("v_mov_b32 v2, %s"%v(O+10)); p("v_mov_b32 v3, %s"%v(O+10)); p("v_permlane32_swap_b32 v2, v3"); p("s_nop 1")
    p("v_subrev_u32 v3, 0x%x, v2"%LO); p("v_cmp_le_u32 vcc, 0x%x, v3"%RNG)
    p("s_cmp_lg_u32 %s, 0"%s(sSLOW)); p("s_cbranch_scc1 %s"%Lok)
    p("s_cbranch_vccz %s"%Lok)
    Lm=p.newlabel("AM")
    addr(); p("v_mov_b32 v2, 0xff800000"); p("s_mov_b32 %s, 64"%s(sCNT))
    p.label(Lm,reset=True)
    rk(0,0); p.wait(lg="all")
    m32(p,SA,v(K0[0],4),v(Q0,4),"0"); m32(p,SA,v(K1[0],4),v(Q1,4),v(SA,16))
    for i in range(0,16,2): p("v_max3_f32 v2, v2, %s, %s"%(v(SA+i),v(SA+i+1)))
    p("v_add_u32 %s, 1024, %s"%(v(KA),v(KA))); p("v_add_u32 %s, 128, %s"%(v(K1A),v(K1A)))
    p("s_sub_u32 %s, %s, 1"%(s(sCNT),s(sCNT))); p("s_cmp_lg_u32 %s, 0"%s(sCNT)); p("s_cbranch_scc1 %s"%Lm)
    p("v_mov_b32 v3, v2"); p("v_permlane32_swap_b32 v2, v3"); p("s_nop 1"); p("v_max_f32 v2, v2, v3")
    for i in range(16): p("v_sub_f32 %s, 0, v2"%v(NM+i))
    p("s_mov_b32 %s, 1"%s(sSLOW)); p("s_branch %s"%Lrun)
    p.label(Lok,reset=True)
    p("v_rcp_f32 v2, v2")
    for i in range(10): p("v_mul_f32 %s, %s, v2"%(v(O+i),v(O+i)))
    for i in range(5): C(O+i,O+2*i)
    p("s_mul_i32 %s, %s, %d"%(s(sT[0]),s(sBLK),OA_M)); p("s_add_u32 %s, %s, 0x%x"%(s(sT[0]),s(sT[0]),WS_OA)); add64s(p,sQ,sWS,sT[0])
    p("s_lshl_b32 %s, %s, 10"%(s(sT[1]),s(sH_))); p("v_add_u32 v2, %s, %s"%(s(sT[1]),v(L16)))
    p("global_store_dwordx4 v2, %s, %s%s"%(v(O,4),s(sQ,2),st),"st")
    p("s_lshr_b32 %s, %s, 2"%(s(sT[1]),s(sH_))); p("s_lshl_b32 %s, %s, 9"%(s(sT[1]),s(sT[1]))); p("s_and_b32 %s, %s, 3"%(s(sT[2]),s(sH_))); p("s_lshl_b32 %s, %s, 2"%(s(sT[2]),s(sT[2])))
    p("s_add_u32 %s, %s, %s"%(s(sT[1]),s(sT[1]),s(sT[2]))); p("s_add_u32 %s, %s, 32768"%(s(sT[1]),s(sT[1])))
    p("v_add_u32 v3, %s, %s"%(s(sT[1]),v(L16)))
    p("s_mov_b64 exec, 0xffffffff"); p("global_store_dword v3, %s, %s%s"%(v(O+4),s(sQ,2),st),"st"); p("s_mov_b64 exec, -1")
    p.label(Lsk,reset=True)
    p("s_waitcnt vmcnt(0)"); p("s_barrier")
    Ls2=p.newlabel("AG")
    p("s_cmp_lg_u32 %s, 0"%s(sW)); p("s_cbranch_scc1 %s"%Ls2)
    p("v_add_u32 v2, %s, v0"%s(sBLK)); p("v_cmp_gt_u32 vcc, 64, v2"); p("s_and_b64 vcc, vcc, 15"); p("s_cbranch_vccz %s"%Ls2)
    p("v_lshlrev_b32 v2, 7, v2"); p("v_add_u32 v2, 0x%x, v2"%(WS_FLAG+128*F_OA)); p("v_mov_b32 v3, 1")
    p("s_mov_b64 exec, vcc"); p("global_atomic_add v2, v3, %s"%s(sWS,2)); p("s_mov_b64 exec, -1")
    p.label(Ls2,reset=True); p.vm=[]
    p("s_add_u32 %s, %s, 28"%(s(sBLK),s(sBLK))); p("s_add_u32 %s, %s, 1"%(s(sRND),s(sRND)))
    p("s_cmp_lt_u32 %s, 3"%s(sRND)); p("s_cbranch_scc1 %s"%Lr)
    p("s_branch %s"%Lnext)

def attn_b(p,cfg,sJ,nwg,Lnext,abort):
    st=cfg.get("st"," sc1"); ncls=nwg//32
    sH_,sS,sFL,sPRG,sBUF=56,57,59,60,61; sP=62; sQ=64; sM_=66; MK=[68,70,72,74]; sC=76; sA,sB_,sMW=77,78,79
    p("s_and_b32 %s, %s, 31"%(s(sH_),s(sJ))); p("s_lshr_b32 %s, %s, 5"%(s(sS),s(sJ)))
    p("s_mov_b32 %s, 0x%x"%(s(sC),f2u(CB))); p("s_mov_b32 %s, 0"%s(sPRG)); p("s_mov_b32 %s, 0"%s(sBUF))
    L16,IDX,OAD,XW,XR,BA=1,4,5,6,7,8
    g,c,r4,c4,t0,t1,t2,t3,DA,DB,RQ0,RQ1=range(12,24)
    p("v_lshlrev_b32 %s, 4, v0"%v(L16))
    p("v_lshrrev_b32 %s, 4, v0"%v(g)); p("v_and_b32 %s, 15, v0"%v(c)); p("v_lshrrev_b32 %s, 2, %s"%(v(r4),v(c))); p("v_and_b32 %s, 3, %s"%(v(c4),v(c)))
    p("s_and_b32 %s, %s, 1"%(s(sT[1]),s(sW))); p("s_lshl_b32 %s, %s, 2"%(s(sT[0]),s(sT[1])))
    p("v_add_u32 %s, %s, %s"%(v(t0),s(sT[0]),v(g))); p("v_lshrrev_b32 %s, 1, %s"%(v(t1),v(c))); p("v_xor_b32 %s, %s, %s"%(v(t2),v(t0),v(t1)))
    p("v_and_b32 %s, 1, %s"%(v(t1),v(c))); p("v_lshlrev_b32 %s, 4, %s"%(v(t1),v(t1))); p("v_lshl_add_u32 %s, %s, 5, %s"%(v(t2),v(t2),v(t1)))
    p("v_lshrrev_b32 %s, 1, %s"%(v(t0),v(g))); p("v_and_b32 %s, 1, %s"%(v(t3),v(g)))
    p("v_lshlrev_b32 %s, 16, %s"%(v(DA),v(t0))); p("v_add_u32 %s, %s, %s"%(v(DA),v(DA),v(t2)))
    p("v_lshl_add_u32 %s, %s, 19, %s"%(v(DB),v(t3),v(DA))); p("v_lshl_add_u32 %s, %s, 13, %s"%(v(DA),v(t3),v(DA)))
    p("s_lshr_b32 %s, %s, 1"%(s(sT[0]),s(sW))); p("s_lshl_b32 %s, %s, 4"%(s(sT[2]),s(sT[0])))
    p("s_lshl_b32 %s, %s, 2"%(s(sT[3]),s(sT[1]))); p("s_add_u32 %s, %s, %s"%(s(sA),s(sT[2]),s(sT[3])))
    p("s_lshl_b32 %s, %s, 1"%(s(sT[3]),s(sT[1]))); p("s_add_u32 %s, %s, %s"%(s(sB_),s(sT[2]),s(sT[3])))
    p("s_lshl_b32 %s, %s, 13"%(s(sA),s(sA))); p("s_lshl_b32 %s, %s, 13"%(s(sB_),s(sB_))); p("s_lshl_b32 %s, %s, 8"%(s(sT[2]),s(sH_)))
    p("s_add_u32 %s, %s, %s"%(s(sA),s(sA),s(sT[2]))); p("s_add_u32 %s, %s, %s"%(s(sB_),s(sB_),s(sT[2]))); p("s_lshl_b32 %s, %s, 10"%(s(sMW),s(sW)))
    BL=[(m,k) for k in range(9) for m in "kv"]
    def wreg(n,j): r=224+16*n+8*j; return r+32 if n<16 else 224+16*(n-16)+8*j
    def wr(n,j): return 256+16*n+8*j if n<16 else 224+16*(n-16)+8*j
    def dma_block(n):
        m,k=BL[n]; base=sWK if m=="k" else sWV
        sgm,u=divmod(k,3); c_,a_,b_=STAGES[sgm]
        for y in range(4):
            if u==0: d=64*c_+32*(y//2)+2*(y%2); so=sA; vo=DA
            else: d=64*a_+32*(y//2)+4*(u-1)+(y%2); so=sB_; vo=DB
            p("s_add_u32 %s, %s, 0x%x"%(s(sT[0]),s(so),d*8192)); add64s(p,sP,base,sT[0])
            p("s_add_u32 m0, %s, 0x%x"%(s(sMW),(n%9)*16384+y*4096)); p("s_nop 0")
            p("global_load_lds_dwordx4 %s, %s"%(v(vo),s(sP,2)),"blk%d"%n)
    p("s_barrier")
    for n in range(9): dma_block(n)
    p("v_lshl_add_u32 %s, %s, 2, %s"%(v(t0),v(g),v(r4))); p("v_and_b32 %s, 7, %s"%(v(t1),v(t0))); p("v_lshlrev_b32 %s, 8, %s"%(v(t0),v(t0)))
    p("v_lshl_add_u32 %s, %s, 3, %s"%(v(t0),v(c4),v(t0))); p("s_lshl_b32 %s, %s, 1"%(s(sT[0]),s(sW))); p("v_xor_b32 %s, %s, %s"%(v(t2),s(sT[0]),v(t1)))
    p("v_lshl_add_u32 %s, %s, 5, %s"%(v(RQ0),v(t2),v(t0))); p("v_xor_b32 %s, 32, %s"%(v(RQ1),v(RQ0)))
    for n in range(18):
        p.wait(vm="blk%d"%n,lg="all"); p("s_barrier")
        if 1<=n and n+8<18: dma_block(n+8)
        base=(n%9)*16384
        for j in range(2):
            a_=(RQ0,RQ1)[j]
            if base>=65536: p("v_add_u32 %s, 0x%x, %s"%(v(t2+j),base&~0xffff,v(a_))); a_=t2+j
            for y in range(4): p("ds_read_b64_tr_b16 %s, %s offset:%d"%(ur(wr(n,j)+2*y,2),v(a_),(base&0xffff)+4096*y),"tr")
    MST=49152; XB=MST+9216
    p("v_and_b32 %s, 2, %s"%(v(t0),v(c))); p("v_cmp_eq_u32 vcc, 0, %s"%v(t0)); p("v_mov_b32 %s, 0xeeee"%v(t1)); p("v_mov_b32 %s, 0x4444"%v(t2))
    p("v_cndmask_b32 %s, %s, %s, vcc"%(v(IDX),v(t1),v(t2)))
    p("v_xor_b32 %s, %s, %s"%(v(t0),v(g),v(r4))); p("v_lshlrev_b32 %s, 3, %s"%(v(t0),v(t0))); p("v_lshl_add_u32 %s, %s, 5, %s"%(v(t0),v(c),v(t0)))
    p("s_add_u32 %s, %s, %d"%(s(sT[0]),s(sMW),XB)); p("v_add_u32 %s, %s, %s"%(v(XW),s(sT[0]),v(t0)))
    p("v_xor_b32 %s, %s, %s"%(v(t0),v(g),v(c4))); p("v_lshlrev_b32 %s, 3, %s"%(v(t0),v(t0))); p("v_lshl_add_u32 %s, %s, 2, %s"%(v(t1),v(g),v(r4)))
    p("v_lshl_add_u32 %s, %s, 5, %s"%(v(t0),v(t1),v(t0))); p("v_add_u32 %s, %d, %s"%(v(XR),XB,v(t0)))
    p("v_lshrrev_b32 %s, 1, %s"%(v(t0),v(g))); p("v_lshlrev_b32 %s, 10, %s"%(v(t0),v(t0))); p("v_and_b32 %s, 1, %s"%(v(t1),v(g)))
    p("v_lshl_add_u32 %s, %s, 5, %s"%(v(t1),v(t1),v(c))); p("v_lshl_add_u32 %s, %s, 4, %s"%(v(OAD),v(t1),v(t0)))
    p("v_lshlrev_b32 %s, 2, %s"%(v(t0),v(g)))
    for j in range(4): p("v_add_u32 %s, %d, %s"%(v(t1),j,v(t0))); p("v_cmp_le_u32 %s, %s, %s"%(s(MK[j],2),v(t1),v(c)))
    Q,K,V,KM,MEM=12,44,76,84,100
    AK,AV=136,144; VM=152
    S00,S01,S11,SM0,SM1=156,160,164,168,172
    E_=176; P0,P1,PM0,PM1,ONES,NINF=192,196,200,202,204,208
    L0_,L1_=212,216; O=100
    p.wait(lg="all")
    for i in range(4): p("v_mov_b32 %s, 0x3f803f80"%v(ONES+i))
    p("v_mov_b32 %s, 0xff800000"%v(NINF))
    for r in (P0+2,P0+3,PM0+1,PM1+1,VM+1,VM+3): p("v_mov_b32 %s, 0"%v(r))
    Lw,Lg=p.newlabel("BW"),p.newlabel("BG")
    p("v_min_u32 v2, 15, v0"); p("v_cmp_gt_u32 vcc, 8, v2"); p("v_mov_b32 v9, 32"); p("v_mov_b32 v10, 64"); p("v_cndmask_b32 v9, v9, v10, vcc")
    p("v_lshlrev_b32 v2, 7, v2"); p("v_add_u32 v2, 0x%x, v2"%(WS_FLAG+128*F_KV))
    p.label(Lw)
    p("global_load_dword v3, v2, %s sc1"%s(sWS,2)); p("s_waitcnt vmcnt(0)"); p("v_cmp_gt_u32 vcc, v9, v3"); p("s_cbranch_vccz %s"%Lg)
    p("s_sub_u32 %s, %s, 1"%(s(sBUD),s(sBUD))); p("s_cbranch_scc1 %s"%abort); p("s_sleep 8"); p("s_branch %s"%Lw)
    p.label(Lg)
    p("v_and_b32 v9, 31, v0"); p("v_lshlrev_b32 v9, 7, v9"); p("v_add_u32 v9, 0x%x, v9"%(WS_FLAG+128*F_KM))
    def stage(tag):
        p("s_mul_i32 %s, %s, %d"%(s(sT[0]),s(sH_),KV_H)); p("s_lshl_b32 %s, %s, 14"%(s(sT[1]),s(sT[6]))); p("s_add_u32 %s, %s, %s"%(s(sT[0]),s(sT[0]),s(sT[1])))
        p("s_lshl_b32 %s, %s, 11"%(s(sT[2]),s(sW))); p("s_add_u32 %s, %s, %s"%(s(sT[0]),s(sT[0]),s(sT[2]))); p("s_add_u32 %s, %s, 0x%x"%(s(sT[0]),s(sT[0]),WS_KV)); add64s(p,sP,sWS,sT[0])
        p("s_lshl_b32 %s, %s, 19"%(s(sT[0]),s(sH_))); p("s_lshl_b32 %s, %s, 13"%(s(sT[1]),s(sT[6]))); p("s_add_u32 %s, %s, %s"%(s(sT[0]),s(sT[0]),s(sT[1])))
        p("s_add_u32 %s, %s, %s"%(s(sT[0]),s(sT[0]),s(sT[2]))); p("s_add_u32 %s, %s, 0x%x"%(s(sT[0]),s(sT[0]),WS_QX)); add64s(p,sQ,sWS,sT[0])
        p("s_add_u32 %s, %s, %s"%(s(sT[2]),s(sT[2]),s(sT[7])))
        for part,(ptr,lo) in enumerate(((sQ,0),(sP,8192),(sP,16384))):
            if part==2: add64(p,sP,sP,8192)
            p("s_add_u32 m0, %s, %d"%(s(sT[2]),lo)); p("s_nop 0")
            for q in range(2): p("global_load_lds_dwordx4 %s, %s offset:%d sc1"%(v(L16),s(ptr,2),1024*q),tag)
    p("s_barrier")
    p("s_mov_b32 %s, %s"%(s(sT[6]),s(sS))); p("s_mov_b32 %s, 0"%s(sT[7])); stage("cur")
    Lt=p.newlabel("BT")
    p.label(Lt,reset=True); p.vm=[("cur",set())]*6
    p("s_cmp_ge_u32 %s, 64"%s(sS)); p("s_cbranch_scc1 %s"%Lnext)
    Lp,Lq=p.newlabel("BL"),p.newlabel("BM")
    p("s_cmp_lt_u32 %s, %s"%(s(sS),s(sPRG))); p("s_cbranch_scc1 %s"%Lq)
    p("v_mov_b32 v2, %d"%(XB+8192))
    p("s_cmp_lg_u32 %s, 0"%s(sW)); p("s_cbranch_scc1 %s_b"%Lp)
    p.label(Lp)
    p("global_load_dword v3, v9, %s sc1"%s(sWS,2)); p("s_waitcnt vmcnt(0)")
    p("v_cmp_ge_u32 vcc, %s, v3"%s(sS)); p("s_add_u32 %s, %s, %d"%(s(sT[0]),s(sS),3*ncls)); p("s_cbranch_vccz %s_ok"%Lp)
    p("s_sub_u32 %s, %s, 1"%(s(sBUD),s(sBUD))); p("s_cbranch_scc1 %s"%abort); p("s_sleep %d"%cfg.get("psleep",6)); p("s_branch %s"%Lp)
    p.label(Lp+"_ok")
    p("v_cmp_ge_u32 vcc, %s, v3"%s(sT[0])); p("s_nop 1"); p("s_cmp_eq_u64 vcc, 0"); p("s_cselect_b32 %s, %s, %s"%(s(sPRG),s(sT[0]),s(sS))); p("s_add_u32 %s, %s, 1"%(s(sPRG),s(sPRG)))
    p("v_mov_b32 v3, %s"%s(sPRG)); p("ds_write_b32 v2, v3"); p("s_waitcnt lgkmcnt(0)")
    p.label(Lp+"_b",reset=True)
    p("s_barrier"); p("ds_read_b32 v3, v2"); p("s_waitcnt lgkmcnt(0)"); p("v_readfirstlane_b32 %s, v3"%s(sPRG))
    p.label(Lq,reset=True); p.vm=[("cur",set())]*6
    p("s_mul_i32 %s, %s, 9216"%(s(sT[0]),s(sS))); p("s_add_u32 %s, %s, %s"%(s(sT[0]),s(sT[0]),s(sMW))); p("s_add_u32 %s, %s, 0x%x"%(s(sT[0]),s(sT[0]),WS_MEMH)); add64s(p,sM_,sWS,sT[0])
    for q in range(3):
        p("s_add_u32 m0, %s, %d"%(s(sMW),MST+4096*q if q<2 else MST+8192));
        if q==2: p("s_cmp_eq_u32 %s, 0"%s(sW)); p("s_cselect_b32 m0, m0, %d"%(XB+4096))
        p("s_nop 0"); p("global_load_lds_dwordx4 %s, %s sc1"%(v(L16),s(sM_,2)),"mem")
        if q<2: add64(p,sM_,sM_,4096)
    p("s_add_u32 %s, %s, %d"%(s(sT[6]),s(sS),ncls)); p("s_min_u32 %s, %s, 63"%(s(sT[6]),s(sT[6]))); p("s_xor_b32 %s, %s, 24576"%(s(sT[7]),s(sBUF))); stage("nxt")
    p("v_add_u32 %s, %s, %s"%(v(BA),s(sBUF),v(L16)))
    for r in range(AK,AK+16,2): p("v_mov_b64 %s, 0"%v(r,2))
    p.wait(vm="mem"); p("s_barrier")
    for k in range(9): p("ds_read_b128 %s, %s offset:%d"%(v(MEM+4*k,4),v(L16),MST+1024*k),"m%d"%k)
    for k in range(9):
        p.wait(lg="m%d"%k)
        for mi,A_ in enumerate((AK,AV)):
            for j in range(2): p("v_smfmac_f32_16x16x64_bf16 %s, %s, %s, %s"%(v(A_+4*j,4),v(MEM+4*k,4),ur(wr(2*k+mi,j),8),v(IDX)))
        if k<8:
            p("ds_read_b128 %s, %s offset:%d"%(v(Q+4*k,4),v(BA),1024*k),"q"); p("ds_read_b128 %s, %s offset:%d"%(v(K+4*k,4),v(BA),8192+1024*k),"q")
    p("s_lshl_b32 %s, %s, 1"%(s(sT[0]),s(sMW))); p("v_add_u32 v2, %s, %s"%(s(sT[0]),v(BA)))
    for j in range(2): p("ds_read_b128 %s, v2 offset:%d"%(v(V+4*j,4),16384+1024*j),"q")
    C=lambda d,a: p("v_cvt_pk_bf16_f32 %s, %s, %s"%(v(d),v(a),v(a+1)))
    for j in range(2):
        a_=AK+4*j; p("v_add_f32 %s, %s, %s"%(v(a_),v(a_),v(a_+2))); p("v_add_f32 %s, %s, %s"%(v(a_+1),v(a_+1),v(a_+3))); C(a_,a_)
        p("ds_write_b32 %s, %s offset:%d"%(v(XW),v(a_),512*j),"xw")
    for j in range(2):
        a_=AV+4*j; p("v_add_f32 %s, %s, %s"%(v(a_),v(a_),v(a_+2))); p("v_add_f32 %s, %s, %s"%(v(a_+1),v(a_+1),v(a_+3))); C(VM+2*j,a_)
    p.wait(lg="all"); p("s_barrier")
    for ks in range(4):
        for rr in range(2): p("ds_read_b64_tr_b16 %s, %s offset:%d"%(v(KM+4*ks+2*rr,2),v(XR),1024*ks+512*rr),"km")
    for ks in range(4):
        m16(p,S00,K+4*ks,Q+4*ks,None if ks==0 else S00); m16(p,S01,K+4*ks,Q+16+4*ks,None if ks==0 else S01); m16(p,S11,K+16+4*ks,Q+16+4*ks,None if ks==0 else S11)
    p.wait(lg="km")
    for ks in range(4):
        m16(p,SM0,KM+4*ks,Q+4*ks,None if ks==0 else SM0); m16(p,SM1,KM+4*ks,Q+16+4*ks,None if ks==0 else SM1)
    for j in range(4):
        p("v_cndmask_b32 %s, %s, %s, %s"%(v(S00+j),v(NINF),v(S00+j),s(MK[j],2))); p("v_cndmask_b32 %s, %s, %s, %s"%(v(S11+j),v(NINF),v(S11+j),s(MK[j],2)))
    src=[S00+i for i in range(4)]+[S01+i for i in range(4)]+[S11+i for i in range(4)]+[SM0,SM0+1,SM1,SM1+1]
    for i in range(12): p("v_exp_f32 %s, %s"%(v(E_+i),v(src[i])))
    for r in (SM0,SM0+1,SM1,SM1+1): p("v_mul_f32 %s, %s, %s"%(v(r),s(sC),v(r)))
    for i in range(12,16): p("v_exp_f32 %s, %s"%(v(E_+i),v(src[i])))
    Lpv,Lok=p.newlabel("BP"),p.newlabel("BO")
    p("s_mov_b32 %s, 0"%s(sT[5]))
    p.label(Lpv)
    C(P0,E_); C(P0+1,E_+2); C(P1,E_+4); C(P1+1,E_+6); C(P1+2,E_+8); C(P1+3,E_+10); C(PM0,E_+12); C(PM1,E_+14)
    m16(p,L0_,ONES,P0); m16(p,L1_,ONES,P1)
    for tq,P in enumerate((P0,P1)):
        for x in range(2): m16(p,O+8*tq+4*x,V+4*x,P)
    m16k(p,L0_,ONES,PM0,L0_); m16k(p,L1_,ONES,PM1,L1_)
    for tq,PM in enumerate((PM0,PM1)):
        for x in range(2): m16k(p,O+8*tq+4*x,VM+2*x,PM,O+8*tq+4*x)
    p("v_subrev_u32 v2, 0x%x, %s"%(LO,v(L0_))); p("v_subrev_u32 v3, 0x%x, %s"%(LO,v(L1_))); p("v_max_u32 v2, v2, v3"); p("v_cmp_le_u32 vcc, 0x%x, v2"%RNG)
    p("s_cmp_lg_u32 %s, 0"%s(sT[5])); p("s_cbranch_scc1 %s"%Lok); p("s_cbranch_vccz %s"%Lok)
    snap=p.snapshot()
    for (m,regs) in ((2,src[0:4]+src[12:14]),(10,src[4:12]+src[14:16])):
        p("v_max_f32 %s, %s, %s"%(v(m),v(regs[0]),v(regs[1])))
        for i in range(2,len(regs),2): p("v_max3_f32 %s, %s, %s, %s"%(v(m),v(m),v(regs[i]),v(regs[i+1])))
        for op in ("v_permlane16_swap_b32","v_permlane32_swap_b32"):
            p("v_mov_b32 %s, %s"%(v(m+1),v(m))); p("%s %s, %s"%(op,v(m),v(m+1))); p("s_nop 1"); p("v_max_f32 %s, %s, %s"%(v(m),v(m),v(m+1)))
    for i in range(16):
        m=2 if (i<4 or i in (12,13)) else 10
        p("v_sub_f32 %s, %s, %s"%(v(E_+i),v(src[i]),v(m))); p("v_exp_f32 %s, %s"%(v(E_+i),v(E_+i)))
    p("s_mov_b32 %s, 1"%s(sT[5])); p("s_nop 7"); p("s_branch %s"%Lpv)
    p.label(Lok); p.restore(snap)
    p("v_rcp_f32 v2, %s"%v(L0_)); p("v_rcp_f32 v3, %s"%v(L1_))
    p("s_mul_i32 %s, %s, %d"%(s(sT[0]),s(sS),OA_M)); p("s_lshl_b32 %s, %s, 13"%(s(sT[1]),s(sH_))); p("s_add_u32 %s, %s, %s"%(s(sT[0]),s(sT[0]),s(sT[1])))
    p("s_lshl_b32 %s, %s, 1"%(s(sT[1]),s(sMW))); p("s_add_u32 %s, %s, %s"%(s(sT[0]),s(sT[0]),s(sT[1])))
    p("s_add_u32 %s, %s, 0x%x"%(s(sT[0]),s(sT[0]),WS_OA+36*1024)); add64s(p,sQ,sWS,sT[0])
    for tq in range(2):
        d=O+8*tq
        for i in range(8): p("v_mul_f32 %s, %s, %s"%(v(d+i),v(d+i),v(2+tq)))
        for i in range(4): C(E_+4*tq+i,d+2*i)
        p("global_store_dwordx4 %s, %s, %s offset:%d%s"%(v(OAD),v(E_+4*tq,4),s(sQ,2),256*tq,st),"st")
    p("s_add_u32 %s, %s, %d"%(s(sFL),s(sS),F_OB))
    signal(p,sFL,st); p.vm=[]
    p("s_xor_b32 %s, %s, 24576"%(s(sBUF),s(sBUF)))
    p("s_add_u32 %s, %s, %d"%(s(sS),s(sS),ncls)); p("s_branch %s"%Lt)

def final_proj(p,cfg,sJ,nteam,Lnext,abort):
    sS,sNT,sFL,sPAR=56,57,59,60; sP=62; sQ=64; sK=66
    p("s_mov_b32 %s, %s"%(s(sS),s(sJ[0]))); p("s_mov_b32 %s, %s"%(s(sNT),s(sJ[1])))
    L16,DB,DA,DL,RD,XA,OUTA,LW,LR=1,4,5,6,7,8,9,10,11
    p("v_lshlrev_b32 %s, 4, v0"%v(L16))
    p("v_lshrrev_b32 v2, 5, v0"); p("v_bfe_u32 v3, v0, 4, 1"); p("v_bfe_u32 v12, v0, 2, 2"); p("v_and_b32 v13, 3, v0"); p("v_lshlrev_b32 v13, 4, v13")
    p("s_lshl_b32 %s, %s, 6"%(s(sT[0]),s(sNT))); p("v_add_u32 v13, %s, v13"%s(sT[0]))
    p("v_lshl_add_u32 v14, v2, 2, v12")
    p("v_lshl_add_u32 v15, v3, 4, v14"); p("v_mov_b32 v16, 1152"); p("v_mad_u32_u24 %s, v15, v16, v13"%v(DB))
    p("v_lshl_add_u32 v15, v3, 3, v14"); p("v_mad_u32_u24 %s, v15, v16, v13"%v(DA))
    p("v_bfe_u32 v14, v0, 3, 2"); p("v_lshl_add_u32 v14, v2, 2, v14"); p("v_mul_u32_u24 v14, 18, v14"); p("v_bfe_u32 v15, v0, 2, 1"); p("v_add_u32 v14, v14, v15")
    p("v_mad_u32_u24 %s, v14, v16, v13"%v(DL))
    p("v_lshl_add_u32 v14, v2, 3, v12"); p("v_lshlrev_b32 v14, 6, v14"); p("v_lshl_add_u32 v14, v3, 5, v14"); p("v_and_b32 v15, 3, v0"); p("v_lshl_add_u32 v14, v15, 3, v14")
    p("s_lshl_b32 %s, %s, 15"%(s(sT[4]),s(sW))); p("v_add_u32 %s, %s, v14"%(v(RD),s(sT[4])))
    p("v_and_b32 v14, 31, v0"); p("v_mul_u32_u24 v14, 1152, v14"); p("s_mul_i32 %s, %s, 288"%(s(sT[1]),s(sW))); p("v_lshl_add_u32 v15, v2, 4, v14"); p("v_add_u32 %s, %s, v15"%(v(XA),s(sT[1])))
    p("s_lshl_b32 %s, %s, 4"%(s(sT[1]),s(sW))); p("s_add_u32 %s, %s, %s"%(s(sT[1]),s(sT[1]),s(sT[0]))); p("v_lshl_add_u32 v15, v2, 3, v14"); p("v_add_u32 %s, %s, v15"%(v(OUTA),s(sT[1])))
    GW=184
    p("s_mul_i32 %s, %s, 288"%(s(sT[1]),s(sW))); p("v_lshlrev_b32 v15, 4, v2"); p("v_add_u32 v15, %s, v15"%s(sT[1]))
    for i in range(9): p("global_load_dwordx4 %s, v15, %s offset:%d"%(v(GW+4*i,4),s(sGW,2),32*i),"gw")
    p("s_lshl_b32 %s, %s, 12"%(s(sT[1]),s(sW))); p("v_add_u32 %s, %s, %s"%(v(LW),s(sT[1]),v(L16)))
    p("s_lshl_b32 %s, %s, 10"%(s(sT[1]),s(sW))); p("v_add_u32 %s, %s, %s"%(v(LR),s(sT[1]),v(L16)))
    def wreg(i): return acc(4*i,4) if i<64 else v(220+4*(i-64),4)
    def wreg2(i,h): return acc(4*i+2*h,2) if i<64 else v(220+4*(i-64)+2*h,2)
    p("s_barrier")
    Lw0,Lgo=p.newlabel("FW"),p.newlabel("FG")
    p("s_cmp_eq_u32 %s, 0"%s(sW)); p("s_cbranch_scc1 %s"%Lw0)
    snap=p.snapshot()
    def loadw(w0):
        if not w0: p("s_mul_i32 %s, %s, 73"%(s(sK),s(sW))); p("s_sub_u32 %s, %s, 36"%(s(sK),s(sK)))
        for c0 in range(0,73,32):
            n=min(32,73-c0)
            for i in range(c0,c0+n):
                if w0:
                    if i<32: base,off,vo=sWOA,18*i*1152,DA
                    elif i<36: base,off,vo=sWOA,(18*8*(i-32)+16)*1152,DL
                    else: k=i-36; base,off,vo=sWO,(32*(k>>1)+8*(k&1))*1152,DB
                    add64(p,sP,base,off)
                else:
                    vo=DB
                    p("s_lshr_b32 %s, %s, 1"%(s(sT[0]),s(sK))); p("s_lshl_b32 %s, %s, 2"%(s(sT[0]),s(sT[0]))); p("s_and_b32 %s, %s, 1"%(s(sT[1]),s(sK)))
                    p("s_add_u32 %s, %s, %s"%(s(sT[0]),s(sT[0]),s(sT[1]))); p("s_mul_i32 %s, %s, %d"%(s(sT[0]),s(sT[0]),8*1152)); add64s(p,sP,sWO,sT[0])
                    p("s_add_u32 %s, %s, 1"%(s(sK),s(sK)))
                p("s_add_u32 m0, %s, %d"%(s(sT[4]),1024*(i-c0))); p("s_nop 0")
                p("global_load_lds_dwordx4 %s, %s"%(v(vo),s(sP,2)),"w%d"%i)
            for i in range(c0,c0+n):
                p.wait(vm="w%d"%i)
                for h in range(2): p("ds_read_b64_tr_b16 %s, %s offset:%d"%(wreg2(i,h),v(RD),1024*(i-c0)+256*h),"t")
            p.wait(lg="all")
    loadw(False); p("s_branch %s"%Lgo)
    p.label(Lw0,reset=True); p.restore(snap); p.hist=[]
    loadw(True)
    p.label(Lgo,reset=True); p.vm=[]; p.lg=[]
    p("s_barrier")
    p("s_mov_b32 %s, 0"%s(sPAR))
    AB,AA,AG=12,28,44; XB=60; RB=96; NB=22
    Lt,Lv0,Lred=p.newlabel("FT"),p.newlabel("FV"),p.newlabel("FR")
    p.label(Lt,reset=True)
    p("s_cmp_ge_u32 %s, 64"%s(sS)); p("s_cbranch_scc1 %s"%Lnext)
    p("s_mul_i32 %s, %s, %d"%(s(sT[2]),s(sS),32*1152)); add64s(p,sQ,sX,sT[2])
    for i in range(9): p("global_load_dwordx4 %s, %s, %s offset:%d"%(v(XB+4*i,4),v(XA),s(sQ,2),32*i),"x")
    add64s(p,sQ,sOUT,sT[2])
    p("s_add_u32 %s, %s, %d"%(s(sFL),s(sS),F_OA)); wait_flag(p,sFL,32,abort,2); p.vm=[]
    for i in range(9): m32(p,AG,v(GW+4*i,4),v(XB+4*i,4),"0" if i==0 else v(AG,16))
    p("s_mul_i32 %s, %s, %d"%(s(sT[2]),s(sS),OA_M)); p("s_mul_i32 %s, %s, %d"%(s(sT[3]),s(sW),73*1024)); p("s_add_u32 %s, %s, %s"%(s(sT[2]),s(sT[2]),s(sT[3])))
    p("s_add_u32 %s, %s, 0x%x"%(s(sT[2]),s(sT[2]),WS_OA+4096)); add64s(p,sP,sWS,sT[2])
    p("s_add_u32 %s, %s, %d"%(s(sFL),s(sS),F_OB)); wait_flag(p,sFL,32,abort,2); p.vm=[]
    p("v_min_u32 v2, 35, v0"); p("s_mul_i32 %s, %s, 36"%(s(sT[2]),s(sNT))); p("v_add_u32 v2, %s, v2"%s(sT[2])); p("v_min_u32 v2, 583, v2"); p("v_lshlrev_b32 v2, 7, v2")
    p("global_load_dword v3, v2, %s offset:-4096 sc1"%s(sP,2),"pf")
    p("s_cmp_eq_u32 %s, 0"%s(sW)); p("s_cbranch_scc1 %s"%Lv0)
    def stream(w0):
        def ld(i):
            if i and i%8==0: add64(p,sP,sP,8192)
            p("global_load_dwordx4 %s, %s, %s offset:%d sc1"%(v(RB+4*(i%NB),4),v(L16),s(sP,2),1024*(i%8)-4096),"a%d"%i)
        for i in range(NB): ld(i)
        for i in range(73):
            p.wait(vm="a%d"%i)
            d=AA if (w0 and i<36) else AB
            first=(i==0) or (w0 and i==36)
            m32(p,d,wreg(i),v(RB+4*(i%NB),4),"0" if first else v(d,16))
            if i+NB<73: ld(i+NB)
        p("s_nop 15")
        if w0:
            for q in range(4): p("ds_write_b128 %s, %s offset:%d"%(v(LW),v(AA+4*q,4),16384+1024*q),"r")
    stream(False); p("s_branch %s"%Lred)
    p.label(Lv0,reset=True); p.vm=[("pf",set())]; p.lg=[]
    stream(True)
    p.label(Lred,reset=True); p.lg=[]
    for q in range(4): p("ds_write_b128 %s, %s offset:%d"%(v(LW),v(AB+4*q,4),1024*q),"r")
    p("ds_write_b32 %s, %s offset:20480"%(v(LR),v(AG)),"r")
    p("s_waitcnt lgkmcnt(0)"); p("s_barrier")
    T=60
    for w_ in range(5): p("ds_read_b128 %s, %s offset:%d"%(v(T+4*w_,4),v(LR),4096*w_),"r")
    p("v_and_b32 v2, 0x83ff, %s"%v(LW)) if False else p("v_subrev_u32 v2, %s, %s"%(s(sT[1]),v(LR))) if False else None
    p("s_lshl_b32 %s, %s, 10"%(s(sT[1]),s(sW))); p("v_subrev_u32 v2, %s, %s"%(s(sT[1]),v(LR)))
    for w_ in range(4): p("ds_read_b32 %s, v2 offset:%d"%(v(T+20+w_),20480+1024*w_),"r")
    p.wait(lg="all")
    p("v_add_f32 v2, %s, %s"%(v(T+20),v(T+21))); p("v_add_f32 v3, %s, %s"%(v(T+22),v(T+23))); p("v_add_f32 v2, v2, v3")
    p("v_mul_f32 v2, 0x%x, v2"%f2u(-math.log2(math.e))); p("v_exp_f32 v2, v2"); p("v_add_f32 v2, 1.0, v2"); p("v_rcp_f32 v2, v2")
    for i in range(4):
        p("v_add_f32 %s, %s, %s"%(v(T+i),v(T+i),v(T+4+i))); p("v_add_f32 %s, %s, %s"%(v(T+8+i),v(T+8+i),v(T+12+i))); p("v_add_f32 %s, %s, %s"%(v(T+i),v(T+i),v(T+8+i)))
        p("v_sub_f32 %s, %s, %s"%(v(T+16+i),v(T+16+i),v(T+i))); p("v_fma_f32 %s, v2, %s, %s"%(v(T+i),v(T+16+i),v(T+i)))
    p("v_cvt_pk_bf16_f32 %s, %s, %s"%(v(T),v(T),v(T+1))); p("v_cvt_pk_bf16_f32 %s, %s, %s"%(v(T+1),v(T+2),v(T+3)))
    p("global_store_dwordx2 %s, %s, %s"%(v(OUTA),v(T,2),s(sQ,2)),"out")
    p("v_xor_b32 %s, 0x8000, %s"%(v(LW),v(LW))); p("v_xor_b32 %s, 0x8000, %s"%(v(LR),v(LR)))
    p("s_add_u32 %s, %s, %d"%(s(sS),s(sS),nteam)); p("s_branch %s"%Lt)
```

```python
from prog import *
from layout import *

sWQ,sWK,sWV,sWO,sMEM0,sWS,sDBG = 4,6,8,10,12,14,16
sH,sW = 18,19
AGP=[(20,22,24),(68,70,72)]
sCA,sCR=76,77
sRSS0,sRSS1,sRSU1,sRSU2 = 28,30,32,34
sLATE,sTAG=74,75
RSLOT=12288
sKX,sKVM,sSTR = 36,38,40
sSTEP,sBUD,sC,sLO,sRNG = 42,43,44,45,46
sT0,sT1,sT2,sT3 = 48,49,50,51
sTA = 52
sTB = 54
sAGOFF = 56
sONE=57
sFKM=26; sNEXT=27
sSTAMP = 58
sSTP   = 60
sTC = 64
sPF = 66
sCPY = 96
sH288 = 97
sAGD=[98,66]
L0,IDX,XW,XR,L2,RSST,RSLD,AGST,PERM,L1,PM,ZERO = 0,1,2,3,4,5,6,7,8,9,10,11
RING=[12,16,20,24]; ACC=28; AQ0,AQ1,AK0,AK1=28,32,36,40; B0=44; B1=52; STR=60; XD=76
VACC=B0
RQ=72
WBASE=80
KXB=131072; VXB=KXB+16384; XB=VXB+8192; OB=XB+4096; C8B=OB+2048; SELB=C8B+1024; JUNKB=SELB+256; FLGB=JUNKB+256
LDS_TOTAL=163840
assert JUNKB+256<=LDS_TOTAL

LDS_BLOCKS=[('k',0),('k',2),('k',4),('k',6),('k',8),('o',2,1),('o',4,1),('o',6,1)]
STR_BLOCKS=[('v',6)]
ALL_BLOCKS=[(m,k) for m in 'qkv' for k in range(9)]+[('o',t,ks) for t in (0,2,4,6) for ks in (0,1)]+[('o8',)]
REG_BLOCKS=[b for b in ALL_BLOCKS if b not in LDS_BLOCKS and b not in STR_BLOCKS]
assert len(REG_BLOCKS)==27
ORDER=STR_BLOCKS+REG_BLOCKS+LDS_BLOCKS
REGBASE={}
for n,b in enumerate(REG_BLOCKS): REGBASE[b]=WBASE+16*n
assert WBASE+16*27==512
LDSREG={b:i for i,b in enumerate(LDS_BLOCKS)}
def region(n): return (n+2)%10
for i,b in enumerate(LDS_BLOCKS): assert region(ORDER.index(b))==i

def lds_addr(off):
    if off<65536: return L0,off
    if off<131072: return L1,off-65536
    return L2,off-131072

def opnd_reg(b,j): return REGBASE[b]+8*j
def o_opnd(tau,ks):
    if tau==8: return (('o8',),ks)
    return (('o',tau&~1,ks),tau&1)

def smf(p,d,a,b): p("v_smfmac_f32_16x16x64_bf16 %s, %s, %s, %s"%(v(d,4),v(a,4),ur(b,8),v(IDX)))
def mf(p,d,a,b,c=None): p("v_mfma_f32_16x16x32_bf16 %s, %s, %s, %s"%(v(d,4),v(a,4),v(b,4),"0" if c is None else v(c,4)))
def mf16(p,d,a,b,c): p("v_mfma_f32_16x16x16_bf16 %s, %s, %s, %s"%(v(d,4),v(a,2),v(b,2),"0" if c is None else v(c,4)))
def zero(p,r,n):
    for i in range(0,n,2): p("v_mov_b64 %s, 0"%v(r+i,2))

def lds_opnd_read(p,w,b,j,dst,tag):
    base=LDSREG[b]*16384+w*4096+j*2048
    for hf in range(2):
        r,im=lds_addr(base+hf*1024)
        p("ds_read_b128 %s, %s offset:%d"%(v(dst+4*hf,4),v(r),im),tag)

def add64(p,dst,src,imm):
    p("s_add_u32 %s, %s, 0x%x"%(s(dst),s(src),imm)); p("s_addc_u32 %s, %s, 0"%(s(dst+1),s(src+1)))
def add64s(p,dst,src,sreg):
    p("s_add_u32 %s, %s, %s"%(s(dst),s(src),s(sreg))); p("s_addc_u32 %s, %s, 0"%(s(dst+1),s(src+1)))

def prologue(p,cfg):
    T=list(range(12,44))
    NEG1=XD
    lane,g,c,r4,c4=T[0],T[1],T[2],T[3],T[4]
    p("v_and_b32 %s, 63, v0"%v(lane))
    p("v_lshrrev_b32 %s, 4, %s"%(v(g),v(lane)))
    p("v_and_b32 %s, 15, %s"%(v(c),v(lane)))
    p("v_lshrrev_b32 %s, 2, %s"%(v(r4),v(c)))
    p("v_and_b32 %s, 3, %s"%(v(c4),v(c)))
    p("v_lshlrev_b32 %s, 4, %s"%(v(L0),v(lane)))
    p("v_add_u32 %s, 0x10000, %s"%(v(L1),v(L0)))
    p("v_add_u32 %s, 0x20000, %s"%(v(L2),v(L0)))
    t0,t1,t2,t3=T[5],T[6],T[7],T[8]
    DA,DB,DO,DO8=T[9],T[10],T[11],T[12]
    RA,RB=T[13],T[14]
    sg=T[15]
    p("s_and_b32 %s, %s, 1"%(s(sT0),s(sW))); p("s_lshl_b32 %s, %s, 2"%(s(sT0),s(sT0)))
    p("v_add_u32 %s, %s, %s"%(v(t0),s(sT0),v(g)))
    p("v_lshrrev_b32 %s, 1, %s"%(v(t1),v(c)))
    p("v_xor_b32 %s, %s, %s"%(v(sg),v(t0),v(t1)))
    p("v_and_b32 %s, 1, %s"%(v(t1),v(c)))
    p("v_lshlrev_b32 %s, 4, %s"%(v(t1),v(t1)))
    p("v_lshl_add_u32 %s, %s, 5, %s"%(v(t2),v(sg),v(t1)))
    p("v_lshrrev_b32 %s, 1, %s"%(v(t0),v(g)))
    p("v_and_b32 %s, 1, %s"%(v(t3),v(g)))
    p("v_lshlrev_b32 %s, 16, %s"%(v(DA),v(t0)))
    p("v_add_u32 %s, %s, %s"%(v(DA),v(DA),v(t2)))
    p("v_lshl_add_u32 %s, %s, 19, %s"%(v(DB),v(t3),v(DA)))
    p("v_lshl_add_u32 %s, %s, 13, %s"%(v(DA),v(t3),v(DA)))
    p("v_lshl_add_u32 %s, %s, 6, %s"%(v(t0),v(t0),v(t3)))
    p("v_mul_u32_u24 %s, 1152, %s"%(v(t0),v(t0)))
    p("v_add_u32 %s, %s, %s"%(v(DO),v(t0),v(t2)))
    p("v_lshrrev_b32 %s, 2, %s"%(v(t3),v(sg)))
    p("v_mul_u32_u24 %s, %d, %s"%(v(t3),32*1152,v(t3)))
    p("v_and_b32 %s, 3, %s"%(v(DO8),v(sg)))
    p("v_lshl_add_u32 %s, %s, 5, %s"%(v(DO8),v(DO8),v(t1)))
    p("v_add3_u32 %s, %s, %s, %s"%(v(DO8),v(DO8),v(t0),v(t3)))
    sA,sB,sO=62,63,64
    p("s_lshr_b32 %s, %s, 1"%(s(sT0),s(sW))); p("s_and_b32 %s, %s, 1"%(s(sT1),s(sW)))
    p("s_lshl_b32 %s, %s, 4"%(s(sT2),s(sT0)))
    p("s_lshl_b32 %s, %s, 2"%(s(sT3),s(sT1))); p("s_add_u32 %s, %s, %s"%(s(sA),s(sT2),s(sT3)))
    p("s_lshl_b32 %s, %s, 1"%(s(sT3),s(sT1))); p("s_add_u32 %s, %s, %s"%(s(sB),s(sT2),s(sT3)))
    p("s_lshl_b32 %s, %s, 13"%(s(sA),s(sA))); p("s_lshl_b32 %s, %s, 13"%(s(sB),s(sB)))
    p("s_lshl_b32 %s, %s, 8"%(s(sT2),s(sH)))
    p("s_add_u32 %s, %s, %s"%(s(sA),s(sA),s(sT2))); p("s_add_u32 %s, %s, %s"%(s(sB),s(sB),s(sT2)))
    p("s_lshl_b32 %s, %s, 4"%(s(sT2),s(sT1))); p("s_lshl_b32 %s, %s, 2"%(s(sT3),s(sT0))); p("s_add_u32 %s, %s, %s"%(s(sO),s(sT2),s(sT3)))
    p("s_mul_i32 %s, %s, 1152"%(s(sO),s(sO)))
    p("s_mul_i32 %s, %s, 147456"%(s(sT2),s(sH))); p("s_add_u32 %s, %s, %s"%(s(sO),s(sO),s(sT2)))
    sMW=65
    p("s_lshl_b32 %s, %s, 10"%(s(sMW),s(sW)))
    def dma_block(n):
        b=ORDER[n]; reg=region(n)
        for y in range(4):
            if b[0] in 'qkv':
                base={'q':sWQ,'k':sWK,'v':sWV}[b[0]]
                sgm,u=divmod(b[1],3); c_,a_,b_=STAGES[sgm]
                if u==0: d=64*c_+32*(y//2)+2*(y%2); so=sA; vo=DA
                else: d=64*a_+32*(y//2)+4*(u-1)+(y%2); so=sB; vo=DB
                imm=d*8192
            elif b[0]=='o':
                base=sWO; so=sO; vo=DO; imm=(32*b[2]+8*(y//2)+2*(y%2))*1152+128*b[1]
            else:
                base=sWO; so=sO; vo=DO8; imm=(8*(y//2)+2*(y%2))*1152+128*8
            p("s_add_u32 %s, %s, 0x%x"%(s(sT0),s(so),imm))
            p("s_add_u32 %s, %s, %s"%(s(sTA),s(base),s(sT0))); p("s_addc_u32 %s, %s, 0"%(s(sTA+1),s(base+1)))
            p("s_add_u32 m0, %s, 0x%x"%(s(sMW),reg*16384+y*4096))
            p("global_load_lds_dwordx4 %s, %s%s"%(v(vo),s(sTA,2),cfg.get("wmod","")),"blk%d"%n)
    NFL=10
    for n in range(NFL): dma_block(n)
    RQ0,RQ1,RO0,RO1=T[16],T[17],T[18],T[19]
    p("v_lshl_add_u32 %s, %s, 2, %s"%(v(t0),v(g),v(r4)))
    p("v_and_b32 %s, 7, %s"%(v(t1),v(t0)))
    p("v_lshlrev_b32 %s, 8, %s"%(v(t0),v(t0)))
    p("v_lshl_add_u32 %s, %s, 3, %s"%(v(t0),v(c4),v(t0)))
    p("s_lshl_b32 %s, %s, 1"%(s(sT0),s(sW)))
    p("v_xor_b32 %s, %s, %s"%(v(t2),s(sT0),v(t1)))
    p("v_lshl_add_u32 %s, %s, 5, %s"%(v(RQ0),v(t2),v(t0)))
    p("v_xor_b32 %s, 32, %s"%(v(RQ1),v(RQ0)))
    p("v_xor_b32 %s, %s, %s"%(v(t2),s(sW),v(t1)))
    p("v_lshl_add_u32 %s, %s, 5, %s"%(v(RO0),v(t2),v(t0)))
    p("v_xor_b32 %s, 128, %s"%(v(RO1),v(RO0)))
    p("v_and_b32 %s, 2, %s"%(v(t0),v(c)))
    p("v_cmp_eq_u32 vcc, 0, %s"%v(t0))
    p("v_mov_b32 %s, 0xeeee"%v(t1)); p("v_mov_b32 %s, 0x4444"%v(t2))
    p("v_cndmask_b32 %s, %s, %s, vcc"%(v(IDX),v(t1),v(t2)))
    p("v_xor_b32 %s, %s, %s"%(v(t0),v(g),v(r4)))
    p("v_lshlrev_b32 %s, 3, %s"%(v(t0),v(t0)))
    p("v_lshl_add_u32 %s, %s, 5, %s"%(v(t0),v(c),v(t0)))
    p("s_add_u32 %s, %s, %d"%(s(sT0),s(sMW),XB))
    p("v_add_u32 %s, %s, %s"%(v(XW),s(sT0),v(t0)))
    p("v_xor_b32 %s, %s, %s"%(v(t0),v(g),v(c4)))
    p("v_lshlrev_b32 %s, 3, %s"%(v(t0),v(t0)))
    p("v_lshl_add_u32 %s, %s, 2, %s"%(v(t1),v(g),v(r4)))
    p("v_lshl_add_u32 %s, %s, 5, %s"%(v(t0),v(t1),v(t0)))
    p("v_add_u32 %s, %d, %s"%(v(XR),XB,v(t0)))
    p("v_lshrrev_b32 %s, 3, %s"%(v(t0),v(lane)))
    p("s_lshl_b32 %s, %s, 3"%(s(sT0),s(sW)))
    p("v_add_u32 %s, %s, %s"%(v(t0),s(sT0),v(t0)))
    p("v_mul_u32_u24 %s, %d, %s"%(v(t0),RSLOT,v(t0)))
    p("v_and_b32 %s, 7, %s"%(v(t1),v(lane)))
    p("v_lshlrev_b32 %s, 4, %s"%(v(t2),v(t1)))
    p("s_lshl_b32 %s, %s, 7"%(s(sT0),s(sH)))
    p("v_add3_u32 %s, %s, %s, %s"%(v(RSST),v(t0),v(t2),s(sT0)))
    p("v_lshlrev_b32 %s, 3, %s"%(v(RSLD),v(L0)))
    p("s_lshr_b32 %s, %s, 3"%(s(sT0),s(sH))); p("s_lshl_b32 %s, %s, 8"%(s(sT0),s(sT0)))
    p("s_and_b32 %s, %s, 7"%(s(sT1),s(sH))); p("s_lshl_b32 %s, %s, 5"%(s(sT1),s(sT1)))
    p("s_add_u32 %s, %s, %s"%(s(sT0),s(sT0),s(sT1)))
    p("v_and_b32 %s, 1, %s"%(v(t0),v(t1))); p("v_lshlrev_b32 %s, 4, %s"%(v(t0),v(t0)))
    p("v_lshrrev_b32 %s, 1, %s"%(v(t2),v(t1))); p("v_lshl_add_u32 %s, %s, 2, %s"%(v(t0),v(t2),v(t0)))
    p("v_lshrrev_b32 %s, 2, %s"%(v(t2),v(t1))); p("v_lshlrev_b32 %s, 10, %s"%(v(t2),v(t2)))
    p("v_and_b32 %s, 3, %s"%(v(t3),v(t1))); p("v_lshl_add_u32 %s, %s, 2, %s"%(v(t2),v(t3),v(t2)))
    p("v_lshrrev_b32 %s, 1, %s"%(v(t3),v(g))); p("v_lshl_add_u32 %s, %s, 4, %s"%(v(t2),v(t3),v(t2)))
    p("v_add_u32 %s, 1024, %s"%(v(t2),v(t2)))
    p("v_cmp_eq_u32 vcc, 0, %s"%v(g))
    p("v_cndmask_b32 %s, %s, %s, vcc"%(v(t0),v(t2),v(t0)))
    p("v_add_u32 %s, %s, %s"%(v(AGST),s(sT0),v(t0)))
    if cfg.get("ncopy",2)==2:
        p("v_and_b32 %s, 8, %s"%(v(t0),v(lane))); p("v_lshl_add_u32 %s, %s, 11, %s"%(v(AGST),v(t0),v(AGST)))
        p("s_and_b32 %s, %s, 1"%(s(sCPY),s(sH))); p("s_lshl_b32 %s, %s, 14"%(s(sCPY),s(sCPY)))
    else: p("s_mov_b32 %s, 0"%s(sCPY))
    p("v_and_b32 %s, 1, %s"%(v(t0),v(lane))); p("v_cmp_eq_u32 vcc, 0, %s"%v(t0))
    p("v_mov_b32 %s, 0x03020706"%v(t1)); p("v_mov_b32 %s, 0x05040100"%v(t2))
    p("v_cndmask_b32 %s, %s, %s, vcc"%(v(PERM),v(t1),v(t2)))
    p("v_mov_b32 %s, 0"%v(ZERO)); p("v_mov_b32 %s, 0"%v(PM))
    for i in range(4): p("v_mov_b32 %s, -1"%v(NEG1+i))
    import struct, math
    p("s_mov_b32 %s, 0x%08x"%(s(sC),struct.unpack("<I",struct.pack("<f",math.log2(math.e)/math.sqrt(128.0)))[0]))
    p("s_mov_b32 %s, 0x%08x"%(s(sLO),(127-30)<<23)); p("s_mov_b32 %s, 0x%08x"%(s(sRNG),(65)<<23))
    p("s_mov_b32 %s, 0x3f803f80"%s(sONE)); p("s_lshl_b32 %s, %s, 7"%(s(sFKM),s(sH))); p("s_add_u32 %s, %s, 0x%x"%(s(sFKM),s(sFKM),WS_FLAG+128*F_KM)); p("s_mov_b32 %s, %d"%(s(sNEXT),cfg.get("next0",63)))
    p("s_mov_b32 %s, 0"%s(sSTEP)); p("s_mov_b32 %s, 0x%x"%(s(sBUD),cfg.get("budget",1<<18)))
    add64(p,sRSS0,sWS,WS_RS); add64(p,sRSS1,sWS,WS_RS+0x80000)
    p("s_mov_b32 %s, 1"%s(sTAG))
    p("s_mul_i32 %s, %s, %d"%(s(sT0),s(sH),RSLOT)); p("s_min_u32 %s, %s, 2"%(s(sT1),s(sW))); p("s_lshl_b32 %s, %s, 12"%(s(sT1),s(sT1)))
    p("s_add_u32 %s, %s, %s"%(s(sT0),s(sT0),s(sT1))); p("s_add_u32 %s, %s, 0x%x"%(s(sT0),s(sT0),WS_RS))
    add64s(p,sRSU1,sWS,sT0); add64(p,sRSU2,sRSU1,0x80000)
    p("s_lshl_b32 %s, %s, 15"%(s(sT0),s(sH))); p("s_lshl_b32 %s, %s, 13"%(s(sT1),s(sW))); p("s_add_u32 %s, %s, %s"%(s(sT0),s(sT0),s(sT1)))
    p("s_add_u32 %s, %s, 0x%x"%(s(sT0),s(sT0),WS_STR+4096)); add64s(p,sSTR,sWS,sT0)
    p("s_mul_i32 %s, %s, 288"%(s(sH288),s(sH)))
    p("s_add_u32 %s, %s, 0x%x"%(s(sT0),s(sH288),WS_MEMH)); add64s(p,sKVM,sWS,sT0)
    p("s_mul_i32 %s, %s, %d"%(s(sT0),s(sH),KV_H)); p("s_lshl_b32 %s, %s, 11"%(s(sT1),s(sW))); p("s_add_u32 %s, %s, %s"%(s(sT0),s(sT0),s(sT1)))
    p("s_add_u32 %s, %s, 0x%x"%(s(sT0),s(sT0),WS_KV)); add64s(p,sKX,sWS,sT0)
    st=" sc1"
    for i in range(4): p("v_mov_b32 %s, 0"%v(60+i))
    for b_ in (sRSU1,sRSU2):
        for k in range(4): p("global_store_dwordx4 %s, %s, %s offset:%d%s"%(v(L0),v(60,4),s(b_,2),1024*k,st),"init")
    p("s_lshl_b32 %s, %s, 15"%(s(sT0),s(sW))); p("s_add_u32 %s, %s, 3072"%(s(sT0),s(sT0))); add64s(p,sTA,sWS,sT0)
    for sg_ in range(3):
        p("global_store_dword %s, %s, %s offset:%d%s"%(v(AGST),v(NEG1),s(sTA,2),3072*(sg_-1),st),"init")
    TMP=[44,60]
    pend=None
    for n in range(len(ORDER)):
        b=ORDER[n]
        p.wait(vm="blk%d"%n, lg="all")
        if n==10:
            assert not any(e[0]=="init" for e in p.vm)
            p("s_mov_b64 exec, 1"); p("v_mov_b32 %s, 1"%v(t0)); p("v_mov_b32 %s, 4"%v(t1))
            p("global_atomic_add %s, %s, %s"%(v(t1),v(t0),s(sDBG,2)),"cnt"); p("s_mov_b64 exec, -1")
        p("s_barrier")
        if n>=1 and n+9<len(ORDER): dma_block(n+9)
        if pend is not None:
            pb,tm=pend; base=LDSREG[pb]*16384
            for q in range(4):
                r_,im=lds_addr(base+q*1024)
                p("v_add_u32 %s, %s, %s"%(v(t0),s(66),v(r_))) if q==0 else None
                p("ds_write_b128 %s, %s offset:%d"%(v(t0),v(tm+4*q,4),im),"wb")
            pend=None
        if n==0: p("s_lshl_b32 %s, %s, 12"%(s(66),s(sW)))
        if n==28:
            p("v_min_u32 %s, 2, %s"%(v(t0),v(r4)))
            p("v_mov_b32 %s, 0x3f80"%v(t1)); p("v_mov_b32 %s, 0x3f800000"%v(t2))
            p("v_cmp_eq_u32 vcc, 0, %s"%v(c4)); p("v_cndmask_b32 %s, 0, %s, vcc"%(v(t1),v(t1)))
            p("v_cmp_eq_u32 vcc, 1, %s"%v(c4)); p("v_cndmask_b32 %s, %s, %s, vcc"%(v(t1),v(t1),v(t2)))
            for u in range(3):
                p("v_cmp_eq_u32 vcc, %d, %s"%(u,v(t0))); p("v_cndmask_b32 %s, 0, %s, vcc"%(v(XD+u),v(t1)))
            p("v_mov_b32 %s, 0"%v(XD+3))
            p("v_lshlrev_b32 %s, 4, %s"%(v(t0),v(c))); p("v_add_u32 %s, %d, %s"%(v(t0),SELB,v(t0)))
            p("ds_write_b128 %s, %s"%(v(t0),v(XD,4)),"sel")
            p("v_mov_b32 %s, %d"%(v(t0),FLGB)); p("ds_write_b32 %s, %s"%(v(t0),v(XD+3)),"sel")
        if n==0: p("s_lshl_b32 %s, %s, 11"%(s(67),s(sW)))
        base=region(n)*16384
        rd=(RQ0,RQ1) if b[0] in 'qkv' else (RO0,RO1)
        hi=base>=65536
        dst = REGBASE[b] if b in REGBASE else TMP[n%2]
        for j in range(2):
            a_=rd[j]
            if hi:
                p("v_add_u32 %s, 0x%x, %s"%(v(t2+j),base&~0xffff,v(a_))); a_=t2+j
            for y in range(4):
                p("ds_read_b64_tr_b16 %s, %s offset:%d"%(ur(dst+8*j+2*y,2),v(a_),(base&0xffff)+4096*y),"tr")
        if b in STR_BLOCKS:
            p.wait(lg="all")
            o=2*STR_BLOCKS.index(b)
            for q in range(4):
                p("global_store_dwordx4 %s, %s, %s offset:%d"%(v(L0),v(dst+4*q,4),s(sSTR,2),o*2048+q*1024-4096),"strst")
        if b in LDS_BLOCKS: pend=(b,dst)
    p.wait(lg="all"); p("s_barrier")
    pb,tm=pend; base=LDSREG[pb]*16384
    for q in range(4):
        r_,im=lds_addr(base+q*1024)
        p("v_add_u32 %s, %s, %s"%(v(t0),s(66),v(r_))) if q==0 else None
        p("ds_write_b128 %s, %s offset:%d"%(v(t0),v(tm+4*q,4),im),"wb")
    ma=PM
    p("v_and_b32 %s, 1, %s"%(v(t0),v(c))); p("v_lshl_add_u32 %s, %s, 1, %s"%(v(t0),v(r4),v(t0)))
    p("v_mul_u32_u24 %s, 1152, %s"%(v(t0),v(t0)))
    p("v_and_b32 %s, 2, %s"%(v(t1),v(c))); p("v_lshlrev_b32 %s, 3, %s"%(v(t1),v(t1)))
    p("v_lshl_add_u32 %s, %s, 5, %s"%(v(t1),v(g),v(t1)))
    p("v_add_u32 %s, %s, %s"%(v(ma),v(t0),v(t1)))
    p.wait(lg="all")
    MM=12; RAW=48
    for sg_,(c_,a_,b_) in enumerate(STAGES):
        p("global_load_dwordx4 %s, %s, %s offset:%d"%(v(MM+12*sg_,4),v(ma),s(sMEM0,2),128*c_),"m0")
        p("global_load_dwordx4 %s, %s, %s offset:%d"%(v(RAW+8*sg_,4),v(ma),s(sMEM0,2),128*a_),"m0")
        p("global_load_dwordx4 %s, %s, %s offset:%d"%(v(RAW+4+8*sg_,4),v(ma),s(sMEM0,2),128*b_),"m0")
    p("s_mov_b32 %s, 0x05040100"%s(sT0)); p("s_mov_b32 %s, 0x07060302"%s(sT1))
    p.wait(vm="all")
    for sg_ in range(3):
        A,B=RAW+8*sg_,RAW+4+8*sg_
        for x in range(2):
            for i in range(4):
                p("v_perm_b32 %s, %s, %s, %s"%(v(MM+12*sg_+4+4*x+i),v(B+2*x+i//2),v(A+2*x+i//2),s(sT1 if i%2 else sT0)))
    p("s_lshl_b32 %s, %s, 2"%(s(sT0),s(sH))); p("s_add_u32 %s, %s, %s"%(s(sT0),s(sT0),s(sW))); p("s_lshl_b32 %s, %s, 14"%(s(sT0),s(sT0)))
    p("s_add_u32 %s, %s, 0x%x"%(s(sT0),s(sT0),WS_M0)); add64s(p,AGP[1][0],sWS,sT0); add64(p,sTA,AGP[1][0],4096); add64(p,sTB,AGP[1][0],8192); add64(p,AGP[1][1],AGP[1][0],3072)
    for k in range(8): p("global_store_dwordx4 %s, %s, %s offset:%d"%(v(L0),v(MM+4*k,4),s(sTA,2),1024*k-4096),"m0s")
    p("global_store_dwordx4 %s, %s, %s"%(v(L0),v(MM+32,4),s(sTB,2)),"m0s")
    for k in range(9):
        r_,im=lds_addr(stg_addr(1,k)); p("ds_write_b128 %s, %s offset:%d"%(v(r_),v(MM+4*k,4),im),"m0w")
    p.wait(lg="all")
    Lp=p.newlabel("MB"); Lto=cfg["abort"]
    p("v_mov_b32 %s, 0"%v(PM))
    p.label(Lp)
    p("global_load_dwordx4 %s, %s, %s sc1"%(v(XD,4),v(PM),s(sDBG,2)),"mb"); p.wait(vm="mb")
    p("v_readfirstlane_b32 %s, %s"%(s(sT0),v(XD+1))); p("v_readfirstlane_b32 %s, %s"%(s(sT1),v(XD+2)))
    p("s_sub_u32 %s, %s, 1"%(s(sBUD),s(sBUD))); p("s_cbranch_scc1 %s"%Lto)
    p("v_readfirstlane_b32 %s, %s"%(s(sT2),v(XD+3)))
    p("s_cmp_lt_u32 %s, 128"%s(sT0)); p("s_cbranch_scc1 %s"%Lp)
    p("s_cmp_lt_u32 %s, %d"%(s(sT2),cfg.get("init_need",0))); p("s_cbranch_scc1 %s"%Lp)
    p("s_mov_b32 %s, %s"%(s(62),s(sT1)))
    cfg["hook_first_kv"](p)
    for q in range(2):
        p("s_add_u32 m0, %s, 0x%x"%(s(67),KXB)) if q==0 else None
        p("global_load_lds_dwordx4 %s, %s offset:%d sc1"%(v(L0),s(sKX,2),1024*q),"kv0")
    add64(p,sTA,sKX,8192)
    p("s_add_u32 m0, %s, 0x%x"%(s(67),VXB))
    for q in range(2):
        p("global_load_lds_dwordx4 %s, %s offset:%d sc1"%(v(L0),s(sTA,2),1024*q),"kv0")
    add64(p,sKX,sKX,KV_S)
    p.wait(vm="all")
    p("s_barrier")
    add64(p,AGP[1][2],sWS,0)
    if cfg.get("endstamp"): p("s_memtime s[94:95]"); p("s_memrealtime s[90:91]"); p("s_waitcnt lgkmcnt(0)"); p("s_mov_b32 %s, 0x40000"%s(sBUD))
    p("s_mov_b32 %s, 0"%s(sAGOFF)); p("s_mov_b32 %s, 0"%s(sCA)); p("s_mov_b32 %s, 0"%s(sCR))
    p("s_mul_i32 %s, %s, 3072"%(s(sT0),s(sW))); p("s_add_u32 %s, %s, %s"%(s(sCPY),s(sCPY),s(sT0))); add64s(p,AGP[1][0],AGP[1][0],sT0)
    ag_ptrs(p,0,0)
    names=cfg["entries"]
    Lslow=p.newlabel("SLOWSEL")
    p("s_cmp_lg_u32 %s, 0"%s(62)); p("s_cbranch_scc1 %s"%Lslow)
    for w in range(3):
        p("s_cmp_eq_u32 %s, %d"%(s(sW),w)); p("s_cbranch_scc1 %s"%names[(0,w)])
    p("s_branch %s"%names[(0,3)])
    p.label(Lslow)
    for w in range(3):
        p("s_cmp_eq_u32 %s, %d"%(s(sW),w)); p("s_cbranch_scc1 %s"%names[(1,w)])
    p("s_branch %s"%names[(1,3)])

def ag_ptrs(p,par,w):
    sAGL,sAGS,sAGR=AGP[par]
    p("s_add_u32 %s, %s, 0x%x"%(s(sT3),s(sAGOFF),0x18000+3072)); p("s_and_b32 %s, %s, 0x1ffff"%(s(sT3),s(sT3)))
    add64s(p,sAGR,sWS,sT3)
    p("s_add_u32 %s, %s, 0x8000"%(s(sAGOFF),s(sAGOFF))); p("s_and_b32 %s, %s, 0x1ffff"%(s(sAGOFF),s(sAGOFF)))
    p("s_add_u32 %s, %s, 3072"%(s(sT3),s(sAGOFF))); add64s(p,sAGS,sWS,sT3)
    p("s_add_u32 %s, %s, %s"%(s(sT3),s(sAGOFF),s(sCPY))); add64s(p,sAGL,sWS,sT3)

def stg_addr(par,k):
    return KXB+8192*par+1024*k if k<8 else C8B

def ag_dma(p,par,sg_,tag="ag"):
    base=AGP[par][0]
    p("s_mov_b32 m0, 0x%x"%stg_addr(par,3*sg_))
    for u in range(3):
        if 3*sg_+u==8: p("s_mov_b32 m0, 0x%x"%(C8B-2048))
        p("global_load_lds_dwordx4 %s, %s offset:%d sc1"%(v(L0),s(base,2),1024*u),tag)

def mread(p,par,k,dst,tag=None):
    r_,im=lds_addr(stg_addr(par,k))
    p("ds_read_b128 %s, %s offset:%d"%(v(dst,4),v(r_),im),tag or "m%d"%k)

def pub_read(p,pp,dst):
    p("v_add_u32 %s, %s, %s"%(v(PM),s(sH288),v(L0))); p("v_cmp_gt_u32 vcc, 8192, %s"%v(PM))
    p("v_add_u32 %s, %d, %s"%(v(dst),KXB+8192*pp,v(PM))); p("v_add_u32 %s, %d, %s"%(v(PM),C8B-8192,v(PM)))
    p("v_cndmask_b32 %s, %s, %s, vcc"%(v(PM),v(PM),v(dst))); p("v_min_u32 %s, %d, %s"%(v(PM),LDS_TOTAL-16,v(PM)))
    p("ds_read_b128 %s, %s"%(v(dst,4),v(PM)),"pk")
def pub_store(p,dst,pub):
    p.wait(lg="pk"); p("s_mov_b64 exec, 0x3ffff")
    p("global_store_dwordx4 %s, %s, %s%s"%(v(L0),v(dst,4),s(sKVM,2),pub),"pub"); p("s_mov_b64 exec, -1")
    add64(p,sKVM,sKVM,9216)
def sig(p,extra=0):
    if extra: p("s_add_u32 %s, %s, %d"%(s(sSTEP),s(sSTEP),extra))
    p("v_mov_b32 %s, %s"%(v(XD),s(sFKM))); p("v_mov_b32 %s, %s"%(v(XD+1),s(sSTEP))); p("s_mov_b64 exec, 1")
    p("global_store_dword %s, %s, %s sc1"%(v(XD),v(XD+1),s(sWS,2)),"sig"); p("s_mov_b64 exec, -1")

def kpre(p,w): lds_opnd_read(p,w,('k',0),0,B0,"kb0"); lds_opnd_read(p,w,('k',0),1,B1,"kb1")

class Filt:
    def __init__(self,p,cfg): self.p=p; self.cfg=cfg
    def __call__(self,text,tag=None):
        if self.cfg.get("nocheck") and text.startswith("s_cbranch_vccnz"): return
        if tag in self.cfg.get("drop",()): return
        self.p(text,tag)
    def __getattr__(self,n): return getattr(self.p,n)

def step(p0,cfg,w,par,slow,L):
    p=Filt(p0,cfg)
    st=" \\md"
    RSS=(sRSS0,sRSS1)[par]
    KXc=KXB+8192*par; KXn=KXB+8192*(1-par)
    sAGL,sAGS,sAGR=AGP[par]
    pp=1-par
    def ST(i):
        if cfg.get("fine") and i in cfg["fine"]: p("%s %s"%("s_memrealtime" if cfg.get("rt") else "s_memtime",s(78+2*i,2)),"fst")
    def nops(n):
        while n>0:
            p("s_nop %d"%(min(n,8)-1)); n-=8
    E=lambda r: p("v_exp_f32 %s, %s"%(v(r),v(r)))
    C=lambda d,a: p("v_cvt_pk_bf16_f32 %s, %s, %s"%(v(d),v(a),v(a+1)))
    def red(a,dst):
        return ["v_add_f32 %s, %s, %s"%(v(a),v(a),v(a+2)),"v_add_f32 %s, %s, %s"%(v(a+1),v(a+1),v(a+3)),"v_cvt_pk_bf16_f32 %s, %s, %s"%(v(dst),v(a),v(a+1))]
    pfs=cfg.get("pfs",[[24,31,42,55],[26,33,46,57],[28,35,47,59],[30,40,49,60]])[w]
    def PF(pos,q=None):
        q=q or p
        if pos not in pfs: return
        n=pfs.index(pos)
        q("s_mov_b32 m0, 0x%x"%JUNKB); add64(q,sTB,sKX,(0,1024,8192,8192+1024)[n]); q("global_load_lds_dword %s, %s sc1"%(v(L0),s(sTB,2)),"pf")
    p.label(L["qk"])
    ST(0)
    if w==0: p.vm.append(("ag2",set(),"pseudo"))
    def first_reads(q):
        for k in range(3): mread(q,pp,k,RING[k])
    def first_check(q):
        q("v_add_f32 %s, %s, %s"%(v(PM),v(RING[0]),v(RING[1]))); q("v_cmp_u_f32 vcc, %s, %s"%(v(PM),v(RING[2])))
    first_reads(p)
    p.label(L["back0"])
    A1,A2=cfg.get("a1",5),cfg.get("a2",17)
    def opq(k,j): return (k,(AQ0,AQ1)[j],opnd_reg(('q',k),j),None)
    def opk(k,j):
        if ('k',k) in LDSREG: return (k,(AK0,AK1)[j],(B0,B1)[j],j)
        return (k,(AK0,AK1)[j],opnd_reg(('k',k),j),None)
    seq=[]
    for k in range(6): seq+=[opq(k,0),opq(k,1),opk(k,0),opk(k,1)]
    seq+=[opq(6,0),opk(6,0),opq(6,1),opk(6,1),opq(7,0),opk(7,0),opq(8,0),opk(8,0),opq(7,1),opk(7,1),opq(8,1),opk(8,1)]
    assert len(seq)==36 and len(set((x[0],x[1]) for x in seq))==36
    str_at={cfg.get("str0",9)+cfg.get("strs",4)*n:n for n in range(4)}
    tail0=red(AQ0,XD+1)+red(AK0,XD)
    gens=cfg.get("qgens",{1:1,4:2,10:2})
    gens={int(a):b for a,b in gens.items()}
    JR=[RING[3],RING[0],XD,STR,STR+4,STR+8]
    def joint_reads(q):
        for k in range(3,9): mread(q,pp,k,JR[k-3],None if k<5 else "pr")
    def joint_check(q):
        q("v_add_f32 %s, %s, %s"%(v(PM),v(JR[0]),v(JR[1]))); q("v_add_f32 %s, %s, %s"%(v(XD+1),v(JR[2]),v(JR[3])))
        q("v_add_f32 %s, %s, %s"%(v(PM),v(PM),v(JR[4]))); q("v_add_f32 %s, %s, %s"%(v(XD+1),v(XD+1),v(JR[5])))
        q("v_cmp_u_f32 vcc, %s, %s"%(v(PM),v(XD+1)))
    def qk_body(q,local):
        rd_at={8:[5],20:[8]}
        if local or cfg.get("all3"): rd_at.update({0:[3],4:[4],12:[6],16:[7]})
        J=cfg.get("joint")
        if J and not local: rd_at.update({12:[6],16:[7]})
        for idx,(k,d,b,lj) in enumerate(seq):
            if not local and not cfg.get("all3"):
                if idx in gens and w==gens[idx]: ag_dma(q,pp,w,"ag2")
                if idx==1 and not cfg.get("vfy"):
                    q.wait(lg="m2"); first_check(q)
                if idx==2:
                    if not cfg.get("vfy"): q("s_cbranch_vccnz %s"%L["retry0"])
                    if cfg.get("qst"): q("s_memrealtime %s"%s(82,2),"fst")
                if J and idx==A1: joint_reads(q)
                if J and idx==11: q.wait(lg="pr"); joint_check(q)
                if J and idx==12:
                    q("s_cbranch_vccnz %s"%L["retry1"]); q.label(L["back1"])
                    if w in (1,2): q.vm.append(("ag2",set(),"pseudo"))
                if J: pass
                elif idx==A1 or idx==A2:
                    kk=3 if idx==A1 else 6
                    mread(q,pp,kk,RING[kk%4]); mread(q,pp,kk+1,RING[(kk+1)%4]); mread(q,pp,kk+2,XD,"pr")
                if not J and (idx==11 or idx==22):
                    kk=3 if idx==11 else 6
                    q.wait(lg="pr"); q("v_add_f32 %s, %s, %s"%(v(PM),v(RING[kk%4]),v(RING[(kk+1)%4]))); q("v_cmp_u_f32 vcc, %s, %s"%(v(PM),v(XD)))
                if not J and (idx==12 or idx==24):
                    sg_=1 if idx==12 else 2
                    q("s_cbranch_vccnz %s"%L["retry%d"%sg_]); q.label(L["back%d"%sg_])
                    if w==sg_: q.vm.append(("ag2",set(),"pseudo"))
                    if cfg.get("qst"): q("s_memrealtime %s"%s(82+2*sg_,2),"fst")
            for kk in rd_at.get(idx,()): mread(q,pp,kk,RING[kk%4])
            q.wait(lg="m%d"%k)
            if lj is not None: q.wait(lg="kb%d"%lj)
            smf(q,d,RING[k%4],b)
            if lj is not None and ('k',k+2) in LDSREG: lds_opnd_read(q,w,('k',k+2),lj,b,"kb%d"%lj)
            if not local:
                if idx in str_at:
                    n=str_at[idx]; q("global_load_dwordx4 %s, %s, %s offset:%d"%(v(STR+4*n,4),v(L0),s(sSTR,2),n*1024-4096),"sb")
                PF(idx,q)
                if idx==30: add64(q,sTA,sKX,8192)
            if w==3:
                p0=cfg.get("pub_at",24)
                if idx==p0 and not local and cfg.get("signal"): q.wait(vm="pub"); sig(q)
                if idx==p0+1:
                    if local: q("s_sub_u32 %s, %s, 9216"%(s(sKVM),s(sKVM))); q("s_subb_u32 %s, %s, 0"%(s(sKVM+1),s(sKVM+1)))
                    pub_read(q,pp,XD)
                if idx==p0+6: pub_store(q,XD,cfg["pub_mod"])
            if idx in (32,33): zero(q,VACC+4*(idx-32),2)
            if idx==33: q(tail0[0])
            if idx==34: q(tail0[1]); q(tail0[2]); q(tail0[3])
            if idx==35: q(tail0[4]); q(tail0[5]); q("ds_write_b64 %s, %s"%(v(XW),v(XD,2)),"xw")
        zero(q,VACC+2,2); zero(q,VACC+6,2)
    qk_body(p,False)
    p.label(L["postqk"])
    ST(1)
    vslot={8:0,7:3,6:2,0:1,1:0,2:3,3:2,4:1,5:0}
    def V(k,j):
        p.wait(lg="v%d"%k)
        if ('v',k) in STR_BLOCKS: p.wait(vm="sb"); b=STR+8*j
        else: b=opnd_reg(('v',k),j)
        smf(p,VACC+4*j,RING[vslot[k]],b)
    def vr(k): mread(p,pp,k,RING[vslot[k]],"v%d"%k)
    KX1=[B1,B1+4,RING[3],RING[2]]
    def kxr(T,ks):
        r_,im=lds_addr(KXc+(4*T+ks)*1024)
        p("ds_read_b128 %s, %s offset:%d"%(v(ACC+4*ks if T==0 else KX1[ks],4),v(r_),im),"kx%d%d"%(T,ks))
    pub=cfg["pub_mod"]
    V(8,0)
    for x in red(AQ1,XD+3)+red(AK1,XD+2): p(x)
    p("ds_write_b64 %s, %s offset:512"%(v(XW),v(XD+2,2)),"xw")
    p("v_cmp_u_f32 vcc, %s, %s"%(v(AK1),v(AK1+1)))
    V(8,1); vr(0); vr(1)
    V(7,0); kxr(0,0); kxr(0,1); PF(40)
    V(7,1); p("s_cbranch_vccnz %s"%L["retry_ag"]); vr(2)
    V(6,0); kxr(0,2); kxr(0,3); PF(42)
    V(6,1); vr(3)
    V(0,0)
    p.wait(vm="ag2",lg="xw"); p("s_barrier"); ST(2)
    X=lambda ks: STR+4*ks
    for ks in range(4):
        for rr in range(2):
            p("ds_read_b64_tr_b16 %s, %s offset:%d"%(v(X(ks)+2*rr,2),v(XR),1024*ks+512*rr),"x%d"%ks)
        if ks==1: V(0,1)
    V(1,0); kxr(1,0); kxr(1,1); vr(4)
    V(1,1); vr(5); PF(46)
    V(2,0); PF(47)
    V(2,1); kxr(1,2)
    V(3,0); PF(49)
    V(3,1); kxr(1,3)
    S0,S1,SM,ONES,LA=XD,ACC,ACC+4,ACC+8,ACC+12
    P=S0; VXa,VXb=B1,B1+4; Oa,Ob=STR,STR+4; OD=STR+8
    for ks in range(4):
        p.wait(lg=["x%d"%ks,"kx0%d"%ks]); mf(p,S0,ACC+4*ks,X(ks),None if ks==0 else S0)
    p.wait(vm="vxn")
    r_,im=lds_addr(VXB+2048*w)
    one=lambda i: p("v_mov_b32 %s, %s"%(v(ONES+i),s(sONE)))
    p.wait(lg="kx10"); mf(p,S1,KX1[0],X(0)); PF(55); one(0); one(1)
    p.wait(lg="kx11"); mf(p,S1,KX1[1],X(1),S1); p("ds_read_b128 %s, %s offset:%d"%(v(VXa,4),v(r_),im),"vx"); p("ds_read_b128 %s, %s offset:%d"%(v(VXb,4),v(r_),im+1024),"vx"); one(2); one(3)
    p.wait(lg="kx12"); mf(p,S1,KX1[2],X(2),S1); PF(57); E(S0)
    p.wait(lg="kx13"); mf(p,S1,KX1[3],X(3),S1); E(S0+1)
    mf(p,SM,X(0),X(0)); PF(59); E(S0+2)
    mf(p,SM,X(1),X(1),SM); PF(60); E(S0+3)
    mf(p,SM,X(2),X(2),SM); C(P,S0); C(P+1,S0+2)
    mf(p,SM,X(3),X(3),SM); PF(62); E(S1)
    V(4,0); E(S1+1)
    V(4,1); PF(64); E(S1+2)
    V(5,0); PF(65); E(S1+3); p("v_mul_f32 %s, %s, %s"%(v(SM),s(sC),v(SM)))
    V(5,1); C(P+2,S1); C(P+3,S1+2); p("v_mul_f32 %s, %s, %s"%(v(SM+1),s(sC),v(SM+1)))
    p.wait(lg="vx")
    mf(p,LA,P,ONES)
    E(SM)
    mf(p,Oa,P,VXa)
    E(SM+1)
    ra,rb=red(VACC,VXa),red(VACC+4,VXb)
    mf(p,Ob,P,VXb)
    C(PM,SM); p(ra[0])
    p(ra[1]); p(ra[2])
    mf16(p,LA,PM,ONES,LA); PF(70); p(rb[0]); p(rb[1])
    mf16(p,Oa,PM,VXa,Oa); p(rb[2])
    mf16(p,Ob,PM,VXb,Ob)
    ST(3)
    R0,R1=OD+2,OD+3
    p("v_rcp_f32 %s, %s"%(v(R0),v(LA+2))); p("v_rcp_f32 %s, %s"%(v(R1),v(LA+3)))
    p("v_subrev_u32 %s, %s, %s"%(v(LA),s(sLO),v(LA+2))); p("v_subrev_u32 %s, %s, %s"%(v(LA+1),s(sLO),v(LA+3)))
    owoff=OB-XB-(w//2)*2044
    for j,o in enumerate((Oa,Ob)):
        p("v_mul_f32 %s, %s, %s"%(v(o+2),v(o+2),v(R0))); p("v_mul_f32 %s, %s, %s"%(v(o+3),v(o+3),v(R1)))
        C(OD+j,o+2)
        p("ds_write_b32 %s, %s offset:%d"%(v(XW),v(OD+j),owoff+512*j),"ow")
    p("v_max_u32 %s, %s, %s"%(v(LA),v(LA),v(LA+1)))
    p("v_cmp_le_u32 vcc, %s, %s"%(s(sRNG),v(LA)))
    zero(p,12,12)
    p("s_cbranch_vccnz %s"%L["slow"])
    p.label(L["oskip"])
    p("s_mov_b32 m0, 0x%x"%(VXB+2048*w))
    zero(p,24,4)
    p("global_load_lds_dwordx4 %s, %s sc1"%(v(L0),s(sTA,2)),"vxn")
    p("global_load_lds_dwordx4 %s, %s offset:1024 sc1"%(v(L0),s(sTA,2)),"vxn")
    p.wait(lg="ow"); p("s_barrier"); ST(4) if not cfg.get("st4") else None
    OA=VACC
    for ks in range(2):
        for rr in range(2):
            p("ds_read_b64_tr_b16 %s, %s offset:%d"%(v(OA+4*ks+2*rr,2),v(XR),OB-XB+1024*ks+512*rr),"oa%d"%ks)
    if w<3:
        add64(p,sTB,sKX,1024*w); p("s_mov_b32 m0, 0x%x"%(KXn+3072*w))
    p("s_cmp_eq_u32 %s, %s"%(s(sSTEP),s(sNEXT)))
    for q_ in range((3,3,2,0)[w]): p("global_load_lds_dwordx4 %s, %s offset:%d sc1"%(v(L0),s(sTB,2),1024*q_),"kxn")
    p("s_cbranch_scc1 %s"%L["event"])
    p.label(L["resume"])
    OACC={8:12,0:16,1:20, 2:24,3:28,4:32, 5:36,6:40,7:76}
    BUF=[52,60,68]
    src={(2,1):BUF[0],(3,1):BUF[1],(4,1):BUF[2],(5,1):BUF[0],(6,1):BUF[1],(7,1):BUF[2]}
    refill={(2,1):(5,1),(3,1):(6,1),(4,1):(7,1)}
    def lo(nk):
        b,j=o_opnd(*nk); lds_opnd_read(p,w,b,j,src[nk],"lo%d%d"%nk)
    def OM(tau,ks):
        key=(tau,ks)
        p.wait(lg="oa%d"%ks)
        if key in src:
            p.wait(lg="lo%d%d"%key); smf(p,OACC[tau],OA+4*ks,src[key])
        else:
            b,j=o_opnd(tau,ks); smf(p,OACC[tau],OA+4*ks,opnd_reg(b,j))
        if key in refill: lo(refill[key])
    def fin_ops(sg_):
        c_,a_,b_=STAGES[sg_]; cc,aa,bb=OACC[c_],OACC[a_],OACC[b_]
        if sg_==0: base,off=RSS,0
        else: base,off=sTC,(0 if sg_==1 else 0)
        return ["v_add_f32 %s, %s, %s"%(v(cc),v(cc),v(cc+2)),"v_add_f32 %s, %s, %s"%(v(cc+1),v(cc+1),v(cc+3)),
         "v_cvt_pk_bf16_f32 %s, %s, %s"%(v(cc),v(cc),v(cc+1)),
         "v_add_f32 %s, %s, %s"%(v(cc+2),v(aa),v(aa+2)),"v_add_f32 %s, %s, %s"%(v(cc+3),v(aa+1),v(aa+3)),
         "v_mov_b32_dpp %s, %s quad_perm:[1,0,3,2] row_mask:0xf bank_mask:0xf"%(v(cc+1),v(cc)),
         "v_mov_b32 %s, %s"%(v(aa+3),s(sTAG)),
         "v_perm_b32 %s, %s, %s, %s"%(v(aa),v(cc+1),v(cc),v(PERM)),
         "v_add_f32 %s, %s, %s"%(v(bb),v(bb),v(bb+2)),"v_add_f32 %s, %s, %s"%(v(bb+1),v(bb+1),v(bb+3)),
         "v_cvt_pk_bf16_f32 %s, %s, %s"%(v(aa+1),v(cc+2),v(bb)),"v_cvt_pk_bf16_f32 %s, %s, %s"%(v(aa+2),v(cc+3),v(bb+1)),
         "global_store_dwordx4 %s, %s, %s%s"%(v(RSST),v(aa,4),s(base,2),st)]
    GA=[12,16,20,24]; GB=[28,32,36,40]; GC=[60,64,68,72]
    def gather(GS,ptr,tg,q=None):
        P_=(q or p); P_=getattr(P_,"p",P_)
        P_.vm=[(e[0],e[1]-{("v",r+i) for r in GS for i in range(4)})+tuple(e[2:]) if e[0][0] in "gi" else e for e in P_.vm]
        for u in range(4): (q or p)("global_load_dwordx4 %s, %s, %s offset:%d sc1"%(v(GS[u],4),v(L0),s(ptr,2),1024*u),"%s%d"%(tg,u))
    f0,f1,f2=fin_ops(0),fin_ops(1),fin_ops(2)
    Z=lambda r: zero(p,r,2)
    OM(8,0); lo((2,1)); Z(28)
    OM(8,1); lo((3,1)); Z(30)
    OM(0,0); lo((4,1)); Z(32)
    OM(0,1); p("s_add_u32 %s, %s, 1"%(s(sSTEP),s(sSTEP))); Z(34)
    OM(1,0)
    if not cfg.get("fix_kx"): add64(p,sKX,sKX,KV_S)
    p(f0[0])
    OM(1,1)
    p(f0[1]); p(f0[2])
    OM(2,0); p(f0[3]); p(f0[4]); p(f0[5])
    OM(2,1)
    for x in f0[6:12]: p(x)
    p(f0[12],"rs0"); ST(5)
    OM(3,0); add64(p,sTC,RSS,4096); Z(36)
    OM(3,1); Z(38)
    OM(4,0); p(f1[0]); Z(40)
    OM(4,1); p(f1[1]); p(f1[2]); Z(42)
    OM(5,0); p(f1[3]); p(f1[4]); p(f1[5]); Z(76)
    OM(5,1); Z(78)
    for x in f1[6:12]: p(x)
    p(f1[12],"rs1")
    g0=cfg.get("g0",2)
    RSL=(sRSU1,sRSU2)[par]
    for n_,(a_,b_) in enumerate(((6,0),(6,1),(7,0),(7,1))):
        if w==0 and g0==n_: gather(GA,RSL,"g")
        OM(a_,b_)
        if n_==0: add64(p,sTC,RSS,8192)
        if n_==2: p(f2[0])
        if n_==3: p(f2[1]); p(f2[2])
    if w==0 and g0==4: gather(GA,RSL,"g")
    for x in f2[3:12]: p(x)
    p(f2[12],"rs2"); ST(6)
    SELR=XD; RD=B0
    UNITS={0:[(0,0)],1:[(1,0),(1,1)],2:[(2,0),(2,1)],3:[(0,1)]}
    def reduce(GS,tg,unit,fail,q=None):
        q=q or p
        sg_,b_=unit; T_=RD+4
        q.wait(lg="sel")
        for u in range(4):
            q.wait(vm="%s%d"%(tg,u)); mf(q,RD,SELR,GS[u],None if u==0 else RD)
            if u==2: q("v_min3_u32 %s, %s, %s, %s"%(v(T_),v(GS[0]+3),v(GS[1]+3),v(GS[2]+3)))
        q("v_min_u32 %s, %s, %s"%(v(T_),v(T_),v(GS[3]+3)))
        q("v_cmp_ne_u32 vcc, %s, %s"%(s(sTAG),v(T_)))
        q("s_nop 4")
        q("s_cbranch_vccnz %s"%fail)
        q("v_add_f32_dpp %s, %s, %s row_ror:8 row_mask:0xf bank_mask:0xf"%(v(RD+2),v(RD),v(RD)))
        q("v_add_f32_dpp %s, %s, %s row_ror:8 row_mask:0xf bank_mask:0xf"%(v(RD+3),v(RD+1),v(RD+1)))
        q("v_cvt_pk_bf16_f32 %s, %s, %s"%(v(RD),v(RD+2),v(RD+3)))
        q("global_store_dword %s, %s, %s offset:%d%s"%(v(AGST),v(RD),s(sAGS,2),3072*(sg_-1)+32*b_,st),"agst")
    def slp(n):
        if n>=16: p("s_sleep %d"%(n//16)); n%=16
        nops(n)
    dg=cfg.get("dg",[0,12,44]); da=cfg.get("da",[52,52]); ins=cfg.get("ins",[0,-1,-1])
    if w in (1,2) and not cfg.get("all3"):
        p("v_mov_b64 %s, -1"%v(60,2)); p("v_mov_b64 %s, -1"%v(62,2))
        for k in range(3*w,3*w+3):
            r_,im=lds_addr(stg_addr(par,k)); p("ds_write_b128 %s, %s offset:%d"%(v(r_),v(60,4),im),"pre")
    if w<3:
        p("v_and_b32 %s, 0x200ff, %s"%(v(PM),v(L2)))
        p("ds_read_b128 %s, %s offset:%d"%(v(SELR,4),v(PM),SELB-131072),"sel")
        ag_ptrs(p,1-par,w); p("s_mov_b32 %s, 0"%s(sLATE))
        if w>0 or g0==5: slp(dg[w]); gather(GA,RSL,"g")
        if ins[w]>=0: slp(ins[w]); gather(GB,RSL,"i")
        reduce(GA,"g",(w,0),L["retry_u1"]); p.label(L["done_u1"]); ST(7)
        p.vm.insert(len(p.vm)-1,("gen",{("v",r) for r in list(range(12,44))+list(range(60,76))},"pseudo"))
        if w==0: p("v_mov_b32 %s, %s"%(v(RD+5),s(sTAG))); p("v_mov_b32 %s, %d"%(v(RD+6),FLGB)); p("ds_write_b32 %s, %s"%(v(RD+6),v(RD+5)),"flg")
        p("v_mov_b32 %s, -1"%v(RD+4))
        p("global_store_dword %s, %s, %s offset:%d%s"%(v(AGST),v(RD+4),s(sAGR,2),3072*(w-1),st),"rst")
        p.wait(vm="gen")
    else:
        ag_ptrs(p,1-par,w)
    kpre(p,w); zero(p,ACC,16)
    def adelay(n):
        Ls=p.newlabel("AD")
        slp(cfg.get("dlate",4)); p("s_cmp_lg_u32 %s, 0"%s(sLATE)); p("s_cbranch_scc1 %s"%Ls); slp(n); p.label(Ls)
    if w==0 and not cfg.get("vfy") and not cfg.get("all3"): adelay(da[0]); ag_dma(p,par,0); slp(cfg.get("gap0",20)); ag_dma(p,par,0,"ag2"); p.wait(vm="ag")
    all3=cfg.get("all3")
    if (w==0 and cfg.get("vfy")) or (all3 and w<3):
        D=cfg["vfy"] if not all3 else all3[w]; p.wait(vm="kxn"); p.wait(lg="all")
        dv=cfg.get("dv",0); slp(dv[w] if isinstance(dv,list) else dv)
        for g_ in range(D):
            ag_dma(p,par,w,"ag2")
            if g_<D-1: slp(cfg.get("pv",20))
        Lv=p.newlabel("VF"); Lok=p.newlabel("VO")
        p.label(Lv)
        p("s_waitcnt vmcnt(%d)"%(3*(D-1)))
        for k in range(3): mread(p,par,3*w+k,RING[k],"vf")
        p("s_sub_u32 %s, %s, 1"%(s(sBUD),s(sBUD))); p("s_cbranch_scc1 %s"%cfg["abort"])
        p.wait(lg="vf")
        p("v_add_f32 %s, %s, %s"%(v(PM),v(RING[0]),v(RING[1]))); p("v_cmp_u_f32 vcc, %s, %s"%(v(PM),v(RING[2])))
        if cfg.get("nocheck"): p("s_branch %s"%Lok)
        p("s_cbranch_vccz %s"%Lok)
        p("s_add_u32 %s, %s, 1"%(s(sCA),s(sCA)))
        p.p.check=False; ag_dma(p,par,w,"ag2"); p.p.check=True
        p("s_branch %s"%Lv)
        p.label(Lok); p.p.hist=[]
    if w==1 and not all3: adelay(da[1]); ag_dma(p,par,1,"ag2")
    p.wait(vm="kxn")
    p("s_add_u32 %s, %s, 1"%(s(sTAG),s(sTAG)))
    ST(8)
    p("s_barrier")
    if cfg.get("stamps"):
        p("s_waitcnt lgkmcnt(0)")
        for q in range(3):
            for i in range(3): p("v_mov_b32 %s, %s"%(v(64+i),s(78+2*(3*q+i))))
            p("global_store_dwordx3 %s, %s, %s offset:%d"%(v(ZERO),v(64,3),s(sSTP,2),16+12*q),"stampst")
        p("v_mov_b32 %s, %s"%(v(64),s(sCA))); p("v_mov_b32 %s, %s"%(v(65),s(sCR)))
        p("global_store_dwordx2 %s, %s, %s offset:4"%(v(ZERO),v(64,2),s(sSTP,2)),"stampst")
        add64(p,sSTP,sSTP,64)
    return dict(gather=gather,reduce=reduce,qk_body=qk_body,GA=GA,GB=GB,GC=GC,first_reads=first_reads,first_check=first_check,RSL=RSL,ins=ins,joint_reads=joint_reads,joint_check=joint_check)

def slow_softmax(p,w,par,L):
    KXc=KXB+8192*par
    p.label(L["slow"],reset=True)
    p("s_waitcnt lgkmcnt(0)"); p("s_nop 7")
    S0,S1,SM,XT,KT=12,16,20,24,28
    ONES,LA=ACC+8,ACC+12
    P=XD; VXa,VXb=B1,B1+4; Oa,Ob=STR,STR+4; OD=STR+8
    for ks in range(4):
        for rr in range(2): p("ds_read_b64_tr_b16 %s, %s offset:%d"%(v(XT+2*rr,2),v(XR),1024*ks+512*rr),"a")
        for T in range(2):
            r_,im=lds_addr(KXc+(4*T+ks)*1024)
            p("ds_read_b128 %s, %s offset:%d"%(v(KT+4*T,4),v(r_),im),"a")
        p.wait(lg="all")
        mf(p,S0,KT,XT,None if ks==0 else S0); mf(p,S1,KT+4,XT,None if ks==0 else S1); mf(p,SM,XT,XT,None if ks==0 else SM)
        p("s_nop 7")
    p("v_mul_f32 %s, %s, %s"%(v(SM),s(sC),v(SM))); p("v_mul_f32 %s, %s, %s"%(v(SM+1),s(sC),v(SM+1)))
    m,m2=SM+2,SM+3
    p("v_max3_f32 %s, %s, %s, %s"%(v(m),v(SM),v(SM+1),v(S0)))
    p("v_max3_f32 %s, %s, %s, %s"%(v(m),v(m),v(S0+1),v(S0+2)))
    p("v_max3_f32 %s, %s, %s, %s"%(v(m),v(m),v(S0+3),v(S1)))
    p("v_max3_f32 %s, %s, %s, %s"%(v(m),v(m),v(S1+1),v(S1+2)))
    p("v_max_f32 %s, %s, %s"%(v(m),v(m),v(S1+3)))
    for op in ("v_permlane16_swap_b32","v_permlane32_swap_b32"):
        p("v_mov_b32 %s, %s"%(v(m2),v(m))); p("%s %s, %s"%(op,v(m),v(m2))); p("s_nop 1"); p("v_max_f32 %s, %s, %s"%(v(m),v(m),v(m2)))
    for r in [S0,S0+1,S0+2,S0+3,S1,S1+1,S1+2,S1+3,SM,SM+1]:
        p("v_sub_f32 %s, %s, %s"%(v(r),v(r),v(m))); p("v_exp_f32 %s, %s"%(v(r),v(r)))
    C=lambda d,a: p("v_cvt_pk_bf16_f32 %s, %s, %s"%(v(d),v(a),v(a+1)))
    C(P,S0); C(P+1,S0+2); C(P+2,S1); C(P+3,S1+2); C(PM,SM)
    r_,im=lds_addr(VXB+2048*w)
    p("ds_read_b128 %s, %s offset:%d"%(v(KT,4),v(r_),im),"a"); p("ds_read_b128 %s, %s offset:%d"%(v(KT+4,4),v(r_),im+1024),"a")
    p.wait(lg="all")
    mf(p,Oa,P,KT); mf(p,Ob,P,KT+4); mf(p,LA,P,ONES)
    mf16(p,LA,PM,ONES,LA); mf16(p,Oa,PM,VXa,Oa); mf16(p,Ob,PM,VXb,Ob)
    R0,R1=OD+2,OD+3
    p("v_rcp_f32 %s, %s"%(v(R0),v(LA+2))); p("v_rcp_f32 %s, %s"%(v(R1),v(LA+3)))
    owoff=OB-XB-(w//2)*2044
    for j,o in enumerate((Oa,Ob)):
        p("v_mul_f32 %s, %s, %s"%(v(o+2),v(o+2),v(R0))); p("v_mul_f32 %s, %s, %s"%(v(o+3),v(o+3),v(R1)))
        C(OD+j,o+2)
        p("ds_write_b32 %s, %s offset:%d"%(v(XW),v(OD+j),owoff+512*j),"ow")
    p.wait(lg="all")
    zero(p,12,12)
    p("s_nop 3")
    p("s_branch %s"%L["oskip"])

def loops(p,cfg):
    def budget(): p("s_sub_u32 %s, %s, 1"%(s(sBUD),s(sBUD))); p("s_cbranch_scc1 %s"%cfg["abort"])
    p.raw(".macro CHAINLOOPS sfx, md"); p.lab_sfx="\\sfx\\()"
    for slow in ("\\sfx\\()",):
        for w in range(4):
            nm="C%s%d"%(slow,w)
            LL=[{k:"%s_%d_%s"%(nm,par,k) for k in ("qk","retry_ag","slow","oskip","join","nored","done_u1","done_u2","retry_u1","retry_u2","retry0","retry1","retry2","back0","back1","back2","postqk","event","resume")} for par in range(2)]
            for L in LL: L["done"]=cfg["done"]
            p.raw(".p2align 6")
            p.label("CE%s%d"%(slow,w),reset=True)
            p.vm=[]; p.lg=[]
            kpre(p,w); zero(p,ACC,16)
            p("s_nop 1")
            keep=len(p.items)
            for par in range(2): step(p,cfg,w,par,slow,LL[par])
            del p.items[keep:]
            G=[step(p,cfg,w,par,slow,LL[par]) for par in range(2)]
            p("s_branch %s"%LL[0]["qk"])
            for par in range(2):
                L=LL[par]; pp=1-par
                p.label(L["retry_ag"],reset=True); p.vm=[]; p.lg=[]
                p("s_waitcnt vmcnt(0) lgkmcnt(0)")
                p("s_add_u32 %s, %s, 0x10000"%(s(sCA),s(sCA))); budget()
                for k in range(9):
                    add64(p,sTA,AGP[pp][1],1024*k); p("s_sub_u32 %s, %s, 3072"%(s(sTA),s(sTA))); p("s_subb_u32 %s, %s, 0"%(s(sTA+1),s(sTA+1))); p("s_mov_b32 m0, 0x%x"%stg_addr(pp,k))
                    p("global_load_lds_dwordx4 %s, %s sc1"%(v(L0),s(sTA,2)))
                kpre(p,w); zero(p,ACC,16)
                p("s_waitcnt vmcnt(0)")
                for k in range(3): mread(p,pp,k,RING[k])
                add64(p,sTA,sKX,8192)
                G[par]["qk_body"](p,True)
                p("s_nop 1")
                p("s_branch %s"%L["postqk"])
                for sg_ in range(0 if not cfg.get("all3") else 3,3):
                    lab=L["retry%d"%sg_]
                    p.label(lab,reset=True); p.vm=[]; p.lg=[]; p.check=False
                    p("s_add_u32 %s, %s, 1"%(s(sCA),s(sCA)))
                    if sg_==0: p("s_waitcnt lgkmcnt(0)"); p("s_nop 3"); zero(p,AQ0,8)
                    p.label(lab+"_p")
                    if cfg.get("joint") and sg_>0:
                        if sg_==1:
                            if w in (1,2): ag_dma(p,pp,w); p("s_waitcnt vmcnt(%d)"%cfg.get("agdepth",3))
                            G[par]["joint_reads"](p); mread(p,pp,5,RING[1]); budget(); p("s_waitcnt lgkmcnt(0)"); G[par]["joint_check"](p)
                            p("s_cbranch_vccnz %s_p"%lab); p("s_branch %s"%L["back1"])
                        else: p("s_endpgm")
                        continue
                    kk=3*sg_
                    if w==sg_: ag_dma(p,pp,sg_); p("s_waitcnt vmcnt(%d)"%cfg.get("agdepth",3))
                    for u in range(3): mread(p,pp,kk+u,RING[(kk+u)%4])
                    budget(); p("s_waitcnt lgkmcnt(0)")
                    p("v_add_f32 %s, %s, %s"%(v(PM),v(RING[kk%4]),v(RING[(kk+1)%4]))); p("v_cmp_u_f32 vcc, %s, %s"%(v(PM),v(RING[(kk+2)%4])))
                    p("s_cbranch_vccnz %s_p"%lab)
                    p("s_branch %s"%L["back%d"%sg_])
                if w<3:
                    lab=L["retry_u1"]; ptr=G[par]["RSL"]
                    SETS=[G[par]["GB"],G[par]["GC"],G[par]["GA"]]
                    p.label(lab,reset=True); p.vm=[]; p.lg=[]; p.check=False
                    p("s_add_u32 %s, %s, 1"%(s(sCR),s(sCR)))
                    p("s_mov_b32 %s, 1"%s(sLATE))
                    if w>0 and cfg.get("follow",1):
                        p("v_mov_b32 %s, %d"%(v(B0+6),FLGB))
                        p.label(lab+"_w")
                        p("ds_read_b32 %s, %s"%(v(B0+5),v(B0+6))); budget(); p("s_waitcnt lgkmcnt(0)")
                        p("v_cmp_ne_u32 vcc, %s, %s"%(s(sTAG),v(B0+5))); p("s_cbranch_vccnz %s_w"%lab)
                        fd=cfg.get("fd",[0,0,24])[w]
                        if fd>=16: p("s_sleep %d"%(fd//16))
                        if fd%16: p("s_nop %d"%(fd%16-1))
                    GA_,GB_=G[par]["GA"],G[par]["GB"]
                    two=cfg.get("two",[1,1,1])[w]
                    G[par]["gather"](GA_,ptr,"z",p)
                    if G[par]["ins"][w]>=0 and not (w>0 and cfg.get("follow",1)): order=[GB_,GA_]
                    elif two:
                        p("s_sleep 2"); G[par]["gather"](GB_,ptr,"z",p); order=[GA_,GB_]
                    else: order=[GA_]
                    p.label(lab+"_l")
                    for k,S_ in enumerate(order):
                        p.hist=[]; p.vm=[("x%d"%u,set()) for u in range(4)]+[("y",set())]*(4*(len(order)-1)); p.lg=[]
                        G[par]["reduce"](S_,"x",(w,0),lab+"_m%d"%k,p)
                        p("s_branch %s"%L["done_u1"])
                        p.label(lab+"_m%d"%k,reset=True)
                        G[par]["gather"](S_,ptr,"z",p); budget()
                    p("s_branch %s_l"%lab)
                p.check=True
                p.label(L["event"],reset=True); p.vm=[]; p.lg=[]
                p("s_cmp_eq_u32 %s, 63"%s(sSTEP)); p("s_cbranch_scc1 %s"%cfg["done"])
                p("s_mov_b32 %s, 63"%s(sNEXT))
                cfg["hook_late"](p)
                p("s_branch %s"%L["resume"])
                p.vm=[]; p.lg=[]
                slow_softmax(p,w,par,L)
    p.raw(".endm"); p.lab_sfx=""
    p.raw("CHAINLOOPS 0,")
    if cfg.get("noslow"):
        for w in range(4): p.raw("CE1%d:"%w)
        p.raw("s_endpgm")
    else: p.raw("CHAINLOOPS 1, sc1")
```

```python
from prog import *
from layout import *
import struct, math
def f2u(x): return struct.unpack("<I",struct.pack("<f",x))[0]
CB=math.log2(math.e)/math.sqrt(128.0); CA=math.log2(math.e)/math.sqrt(18.0)

sWQ,sWK,sWV,sWO,sMEM0,sWS,sDBG = 4,6,8,10,12,14,16
sIDX,sW = 18,19
sX,sWA,sWOA,sGW,sOUT = 20,22,24,26,28
sBUD=30
sT=list(range(32,48))
SRDW=48; SRDX=52
sTASK,sM,sN,sKIND=56,57,58,59
sXO,sWOFF,sWSTEP=60,61,62
sDST=64
sSC=66
sQX,sTRY,sFIRST,sHALF,sROW=68,69,70,71,63
DBG_INIT=12; DBG_Q=136; DBG_R=168; DBG_T5=196; DBG_ARR=200

def claim(p,off_s,dst,ldsaddr=163832):
    L=p.newlabel('CL')
    p('v_mov_b32 v2, %d'%ldsaddr)
    p('s_cmp_lg_u32 %s, 0'%s(sW)); p('s_cbranch_scc1 %s'%L)
    p('s_mov_b64 exec, 1'); p('v_mov_b32 v3, %s'%s(off_s)); p('v_mov_b32 v10, 1')
    p('global_atomic_add v3, v3, v10, %s sc0'%s(sDBG,2)); p('s_waitcnt vmcnt(0)'); p('ds_write_b32 v2, v3'); p('s_waitcnt lgkmcnt(0)'); p('s_mov_b64 exec, -1')
    p.label(L,reset=True)
    p('s_barrier'); p('ds_read_b32 v3, v2'); p('s_waitcnt lgkmcnt(0)'); p('v_readfirstlane_b32 %s, v3'%s(dst)); p('s_barrier')
NST=4; STG=32768

def add64(p,dst,src,imm):
    p("s_add_u32 %s, %s, 0x%x"%(s(dst),s(src),imm)); p("s_addc_u32 %s, %s, 0"%(s(dst+1),s(src+1)))
def add64s(p,dst,src,sreg):
    p("s_add_u32 %s, %s, %s"%(s(dst),s(src),s(sreg))); p("s_addc_u32 %s, %s, 0"%(s(dst+1),s(src+1)))

def signal(p,flag_s,st,val="1"):
    p("s_waitcnt vmcnt(0)"); p("s_barrier")
    L=p.newlabel("SIG")
    p("s_cmp_lg_u32 %s, 0"%s(sW)); p("s_cbranch_scc1 %s"%L)
    p("s_lshl_b32 %s, %s, 7"%(s(sT[0]),s(flag_s))); p("s_add_u32 %s, %s, 0x%x"%(s(sT[0]),s(sT[0]),WS_FLAG))
    p("s_mov_b64 exec, 1"); p("v_mov_b32 v2, %s"%s(sT[0])); p("v_mov_b32 v3, %s"%val)
    p("global_atomic_add v2, v3, %s"%s(sWS,2)); p("s_mov_b64 exec, -1")
    p.label(L)

def wait_flag(p,flag_s,count,abort,vt):
    L=p.newlabel("WF")
    p("s_lshl_b32 %s, %s, 7"%(s(sT[0]),s(flag_s))); p("s_add_u32 %s, %s, 0x%x"%(s(sT[0]),s(sT[0]),WS_FLAG))
    p("v_mov_b32 %s, %s"%(v(vt),s(sT[0])))
    Lg=p.newlabel("WG")
    p.label(L)
    p("global_load_dword %s, %s, %s sc1"%(v(vt+1),v(vt),s(sWS,2)),"fl"); p("s_waitcnt vmcnt(0)")
    p("v_readfirstlane_b32 %s, %s"%(s(sT[1]),v(vt+1)))
    p("s_cmp_ge_u32 %s, %d"%(s(sT[1]),count)); p("s_cbranch_scc1 %s"%Lg)
    p("s_sub_u32 %s, %s, 1"%(s(sBUD),s(sBUD))); p("s_cbranch_scc1 %s"%abort)
    p("s_sleep 8"); p("s_branch %s"%L)
    p.label(Lg)

LANE,XD_,WD_,XR_,WR0,WR1,EA,EB = 0,1,4,5,6,7,8,9
TV=[10,11,12,13,14,15]
class Rec:
    def __init__(self): self.ops=[]
    def __call__(self,text,tag=None): self.ops.append((text,tag))
def accreg(i,j):
    n=4*i+j
    return v(16+16*n,16) if n<15 else acc(0,16)
XOP=[16,48]; WOP=[32,64]

def gemm_tasks(p,cfg,nworkers,Lnext,abort):
    st=cfg.get("st"," sc1")
    Ltop=p.newlabel("GT");
    p("s_mov_b32 %s, 0"%s(sTRY)); p("s_mov_b32 %s, 0"%s(sFIRST))
    p("s_mov_b32 %s, %s"%(s(SRDX),s(sX))); p("s_and_b32 %s, %s, 0xffff"%(s(SRDX+1),s(sX+1))); p("s_mov_b32 %s, %d"%(s(SRDX+2),S*D*2)); p("s_mov_b32 %s, 0x20000"%s(SRDX+3))
    p("s_mov_b32 %s, 0x20000"%s(SRDW+3))
    t0,t1,t2,t3=TV[:4]
    p("v_lshrrev_b32 %s, 2, v0"%v(t0)); p("s_lshl_b32 %s, %s, 4"%(s(sT[0]),s(sW))); p("v_add_u32 %s, %s, %s"%(v(t0),s(sT[0]),v(t0)))
    p("v_mul_u32_u24 %s, 1152, %s"%(v(t0),v(t0)))
    p("v_lshrrev_b32 %s, 4, v0"%v(t1)); p("v_xor_b32 %s, v0, %s"%(v(t1),v(t1))); p("v_and_b32 %s, 3, %s"%(v(t1),v(t1)))
    p("v_lshl_add_u32 %s, %s, 4, %s"%(v(XD_),v(t1),v(t0)))
    p.label(Ltop,reset=True)
    p("s_lshl_b32 %s, %s, 2"%(s(sT[0]),s(sQX))); p("s_add_u32 %s, %s, %d"%(s(sT[0]),s(sT[0]),DBG_Q))
    claim(p,sT[0],sTASK)
    GS=cfg.get("gstamp",lambda i:None)
    GS(0)
    nK,stK=sT[5],sT[6]
    p("s_cmp_lt_u32 %s, 4"%s(sQX)); p("s_cselect_b32 %s, 5, 4"%s(nK)); p("s_cselect_b32 %s, 0, 4"%s(stK))
    p("s_mul_i32 %s, %s, %s"%(s(sT[0]),s(sQX),s(nK))); p("s_add_u32 %s, %s, %s"%(s(stK),s(stK),s(sT[0])))
    p("s_mul_i32 %s, %s, 11"%(s(sT[1]),s(nK))); p("s_mov_b32 %s, 0"%s(sHALF))
    Lo,Lsteal=p.newlabel("GO"),p.newlabel("GS")
    La,Lq,Ld=p.newlabel("GA"),p.newlabel("GQ"),p.newlabel("GD")
    p("s_cmp_ge_u32 %s, %s"%(s(sTASK),s(sT[1]))); p("s_cbranch_scc1 %s"%Lo)
    p("s_cmp_lt_u32 %s, 4"%s(sQX)); p("s_cselect_b32 %s, 0x33333334, 0x40000000"%s(sT[0]))
    p("s_mul_hi_u32 %s, %s, %s"%(s(sM),s(sTASK),s(sT[0]))); p("s_mul_i32 %s, %s, %s"%(s(sT[0]),s(sM),s(nK)))
    p("s_sub_u32 %s, %s, %s"%(s(sN),s(sTASK),s(sT[0]))); p("s_add_u32 %s, %s, %s"%(s(sN),s(sN),s(stK)))
    p("s_lshr_b32 %s, %s, 4"%(s(sKIND),s(sN))); p("s_and_b32 %s, %s, 15"%(s(sN),s(sN)))
    p("s_cmp_lt_u32 %s, 6"%s(sM)); p("s_cselect_b32 %s, 1, 0"%s(sHALF))
    p("s_lshl_b32 %s, %s, 1"%(s(sT[0]),s(sM))); p("s_sub_u32 %s, %s, 6"%(s(sT[0]),s(sT[0])))
    p("s_cmp_lt_u32 %s, 6"%s(sM)); p("s_cselect_b32 %s, %s, %s"%(s(sROW),s(sM),s(sT[0]))); p("s_lshr_b32 %s, %s, 1"%(s(sM),s(sROW)))
    p("s_cmp_eq_u32 %s, 0"%s(sKIND)); p("s_cselect_b32 %s, %s, %s"%(s(SRDW),s(sWK),s(sWV))); p("s_cselect_b32 %s, %s, %s"%(s(SRDW+1),s(sWK+1),s(sWV+1)))
    p("s_branch %s"%Ld)
    p.label(Lsteal)
    p("s_add_u32 %s, %s, 1"%(s(sTRY),s(sTRY))); p("s_cmp_ge_u32 %s, 7"%s(sTRY)); p("s_cbranch_scc1 %s"%Lnext)
    p("s_add_u32 %s, %s, 1"%(s(sQX),s(sQX))); p("s_cmp_ge_u32 %s, 7"%s(sQX)); p("s_cselect_b32 %s, 0, %s"%(s(sQX),s(sQX)))
    p("s_branch %s"%Ltop)
    p.label(Lo)
    p("s_sub_u32 %s, %s, %s"%(s(sT[0]),s(sTASK),s(sT[1]))); p("s_cmp_ge_u32 %s, 32"%s(sT[0])); p("s_cbranch_scc1 %s"%Lsteal)
    p("s_and_b32 %s, %s, 7"%(s(sM),s(sT[0]))); p("s_lshr_b32 %s, %s, 3"%(s(sT[0]),s(sT[0]))); p("s_mul_i32 %s, %s, 7"%(s(sT[0]),s(sT[0]))); p("s_add_u32 %s, %s, %s"%(s(sN),s(sT[0]),s(sQX)))
    p("s_lshl_b32 %s, %s, 1"%(s(sROW),s(sM)))
    p("s_cmp_lt_u32 %s, 12"%s(sN)); p("s_cbranch_scc1 %s"%La)
    p("s_sub_u32 %s, %s, 12"%(s(sN),s(sN))); p("s_mov_b32 %s, 2"%s(sKIND))
    p("s_mov_b32 %s, %s"%(s(SRDW),s(sWQ))); p("s_mov_b32 %s, %s"%(s(SRDW+1),s(sWQ+1)))
    p("s_branch %s"%Ld)
    p.label(La)
    p("s_lshr_b32 %s, %s, 2"%(s(sKIND),s(sN))); p("s_add_u32 %s, %s, 3"%(s(sKIND),s(sKIND)))
    p("s_mov_b32 %s, %s"%(s(SRDW),s(sWA))); p("s_mov_b32 %s, %s"%(s(SRDW+1),s(sWA+1)))
    p.label(Ld)
    p("s_and_b32 %s, %s, 0xffff"%(s(SRDW+1),s(SRDW+1)))
    RS_,BS_=sT[2],sT[3]
    p("s_cmp_ge_u32 %s, 3"%s(sKIND))
    p("s_cselect_b32 %s, 3456, 8192"%s(RS_)); p("s_cselect_b32 %s, 36, 64"%s(BS_))
    p("s_cselect_b32 %s, %d, %d"%(s(SRDW+2),D*3*D*2,D*4096*2))
    p("s_lshl_b32 %s, %s, 3"%(s(sT[0]),s(BS_))); p("s_mul_i32 %s, %s, %s"%(s(sWOFF),s(sN),s(sT[0])))
    p("s_lshl_b32 %s, %s, 3"%(s(sWSTEP),s(RS_)))
    p("s_mul_i32 %s, %s, %d"%(s(sXO),s(sROW),128*1152))
    p("v_lshrrev_b32 %s, 5, v0"%v(t0)); p("s_lshl_b32 %s, %s, 1"%(s(sT[0]),s(sW))); p("v_add_u32 %s, %s, %s"%(v(t0),s(sT[0]),v(t0)))
    p("v_bfe_u32 %s, v0, 2, 3"%v(t1)); p("v_and_b32 %s, 3, %s"%(v(t2),v(t0))); p("v_xor_b32 %s, %s, %s"%(v(t1),v(t1),v(t2)))
    p("v_mul_lo_u32 %s, %s, %s"%(v(t0),v(t0),s(RS_))); p("v_mul_lo_u32 %s, %s, %s"%(v(t1),v(t1),s(BS_)))
    p("v_and_b32 %s, 3, v0"%v(t2)); p("v_lshlrev_b32 %s, 4, %s"%(v(t2),v(t2)))
    p("v_add3_u32 %s, %s, %s, %s"%(v(WD_),v(t0),v(t1),v(t2)))
    def dma(stg,k,p=p,half=False):
        base=(stg%NST)*STG
        for z in range(2 if half else 4):
            p("s_add_u32 %s, %s, %d"%(s(sT[0]),s(sXO),64*k+z*64*1152))
            p("s_add_u32 m0, %s, %d"%(s(sT[4]),base+z*4096))
            p("buffer_load_dwordx4 %s, %s, %s offen lds"%(v(XD_),s(SRDX,4),s(sT[0])),"d%d"%k)
        for z in range(4):
            p("s_add_u32 m0, %s, %d"%(s(sT[4]),base+16384+z*4096))
            p("buffer_load_dwordx4 %s, %s, %s offen lds"%(v(WD_),s(SRDW,4),s(sWOFF)),"d%d"%k)
            p("s_add_u32 %s, %s, %s"%(s(sWOFF),s(sWOFF),s(sWSTEP)))
    p("s_lshl_b32 %s, %s, 10"%(s(sT[4]),s(sW)))
    Lh0,Lh1=p.newlabel("GF"),p.newlabel("GG")
    p("s_cmp_lg_u32 %s, 0"%s(sHALF)); p("s_cbranch_scc1 %s"%Lh0)
    for k in range(NST-1): dma(k,k)
    p("s_branch %s"%Lh1)
    p.label(Lh0,reset=True); p.vm=[]
    for k in range(NST-1): dma(k,k,half=True)
    p.label(Lh1,reset=True); p.vm=[]
    p("v_mov_b32 v3, %d"%DBG_INIT); p("global_load_dword v3, v3, %s sc1"%s(sDBG,2),"ini")
    p("v_and_b32 %s, 31, v0"%v(t0))
    p("v_lshrrev_b32 %s, 1, %s"%(v(t1),v(t0))); p("v_xor_b32 %s, %s, %s"%(v(t1),v(t1),v(t0))); p("v_and_b32 %s, 8, %s"%(v(t1),v(t1)))
    p("v_mul_u32_u24 %s, 3, %s"%(v(t1),v(t1))); p("v_xor_b32 %s, %s, %s"%(v(t1),v(t1),v(t0)))
    p("s_cmp_eq_u32 %s, 1"%s(sKIND)); p("s_cselect_b64 vcc, -1, 0")
    p("v_cndmask_b32 %s, %s, %s, vcc"%(v(t0),v(t0),v(t1)))
    p("v_bfe_u32 %s, %s, 2, 2"%(v(t1),v(t0))); p("v_lshrrev_b32 %s, 5, v0"%v(t2)); p("v_xor_b32 %s, %s, %s"%(v(t1),v(t1),v(t2)))
    p("v_lshlrev_b32 %s, 4, %s"%(v(t1),v(t1))); p("v_lshl_add_u32 %s, %s, 6, %s"%(v(t0),v(t0),v(t1)))
    p("s_lshr_b32 %s, %s, 1"%(s(sT[0]),s(sW))); p("s_sub_u32 %s, 13, %s"%(s(sT[1]),s(sHALF))); p("s_lshl_b32 %s, %s, %s"%(s(sT[0]),s(sT[0]),s(sT[1])))
    p("v_add_u32 %s, %s, %s"%(v(XR_),s(sT[0]),v(t0)))
    p("v_xor_b32 %s, 32, %s"%(v(EA),v(XR_)))
    p("v_and_b32 %s, 3, v0"%v(t0)); p("v_bfe_u32 %s, v0, 4, 1"%v(t1)); p("v_lshl_add_u32 %s, %s, 2, %s"%(v(t2),v(t1),v(t0)))
    p("v_lshrrev_b32 %s, 1, %s"%(v(t3),v(t0))); p("v_lshlrev_b32 %s, 2, %s"%(v(t3),v(t3))); p("v_lshl_add_u32 %s, %s, 1, %s"%(v(t3),v(t1),v(t3)))
    p("v_and_b32 %s, 1, %s"%(v(t0),v(t0))); p("v_add_u32 %s, %s, %s"%(v(t3),v(t3),v(t0)))
    p("s_and_b32 %s, %s, 5"%(s(sT[0]),s(sKIND))); p("s_cmp_eq_u32 %s, 0"%s(sT[0])); p("s_cselect_b64 vcc, -1, 0")
    p("v_cndmask_b32 %s, %s, %s, vcc"%(v(t2),v(t2),v(t3)))
    p("v_bfe_u32 %s, v0, 2, 2"%v(t0))
    p("v_lshrrev_b32 %s, 5, v0"%v(t1)); p("v_lshl_add_u32 %s, %s, 3, %s"%(v(t1),v(t1),v(t0)))
    p("v_lshlrev_b32 %s, 9, %s"%(v(t1),v(t1))); p("v_lshl_add_u32 %s, %s, 3, %s"%(v(t1),v(t2),v(t1)))
    p("v_lshl_add_u32 %s, %s, 6, %s"%(v(t1),v(t0),v(t1)))
    p("s_and_b32 %s, %s, 1"%(s(sT[0]),s(sW))); p("s_lshl_b32 %s, %s, 8"%(s(sT[0]),s(sT[0]))); p("s_add_u32 %s, %s, 16384"%(s(sT[0]),s(sT[0])))
    p("v_add_u32 %s, %s, %s"%(v(WR0),s(sT[0]),v(t1)))
    WR=[WR0,WR1,EB,TV[5]]
    for j in range(1,4): p("v_xor_b32 %s, %d, %s"%(v(WR[j]),64*j,v(WR0)))
    HI=[TV[0],TV[1],TV[2],TV[3],TV[4],2]
    for a_,b_ in zip(HI,[XR_,EA]+WR): p("v_add_u32 %s, 0x10000, %s"%(v(a_),v(b_)))
    def frags(stg,ks,set_,p=p,ni=4):
        base=(stg%NST)*STG; hi=base>=65536; base&=0xffff
        xa=(HI[ks] if hi else (XR_,EA)[ks])
        for i in range(ni): p("ds_read_b128 %s, %s offset:%d"%(acc(XOP[set_]+4*i,4),v(xa),base+2048*i),"f%d"%set_)
        for j in range(4):
            wa=HI[2+j] if hi else WR[j]
            for rho in range(2): p("ds_read_b64_tr_b16 %s, %s offset:%d"%(acc(WOP[set_]+4*j+2*rho,2),v(wa),base+8192*ks+2048*rho),"f%d"%set_)
    Lx=p.newlabel("GX"); Lep=p.newlabel("GE"); Lhh=p.newlabel("GY"); Lhx=p.newlabel("GZ")
    p("s_cmp_lg_u32 %s, 0"%s(sHALF)); p("s_cbranch_scc1 %s"%Lhh)
    p("s_cmp_eq_u32 %s, 1"%s(sKIND)); p("s_cbranch_scc1 %s"%Lx); p("s_cmp_eq_u32 %s, 5"%s(sKIND)); p("s_cbranch_scc1 %s"%Lx)
    def mainloop(xfirst,half=False):
        ni=2 if half else 4
        p.vm=[("d%d"%k,set()) for k in range(NST-1) for z in range(ni+4)]+[("ini",{("v",3)})]; p.lg=[]
        def mm(set_,first,fill):
            n=0
            for i in range(ni):
                for j in range(4):
                    a_,b_=acc(XOP[set_]+4*i,4),acc(WOP[set_]+4*j,4)
                    if not xfirst: a_,b_=b_,a_
                    p("v_mfma_f32_32x32x16_bf16 %s, %s, %s, %s"%(accreg(i,j),a_,b_,"0" if first else accreg(i,j)))
                    if n<len(fill):
                        for t,tg in fill[n]: p(t,tg)
                    n+=1
        def groups(fr,dm):
            g=[fr[2*i:2*i+2] for i in range((len(fr)+1)//2)]
            g+=[dm[3*i:3*i+3] for i in range(len(dm)//3)]
            while len(g)>4*ni: g=[a+b for a,b in zip(g[0::2],g[1::2]+[[]])]
            return g
        p.wait(vm="d0"); p("s_barrier"); GS(1); frags(0,0,0,ni=ni)
        for k in range(18):
            p.wait(lg="f0")
            r=Rec(); frags(k,1,1,r,ni)
            mm(0,k==0,groups(r.ops,[]))
            p.wait(lg="f1")
            if k<17: p.wait(vm="d%d"%(k+1)); p("s_barrier")
            r=Rec(); d_=Rec()
            if k<17: frags(k+1,0,0,r,ni)
            if k+NST-1<18: dma(k+NST-1,k+NST-1,d_,half)
            mm(1,False,groups(r.ops,d_.ops))
    mainloop(False); p("s_branch %s"%Lep)
    p.label(Lx,reset=True); mainloop(True); p("s_branch %s"%Lep)
    p.label(Lhh,reset=True)
    p("s_cmp_eq_u32 %s, 1"%s(sKIND)); p("s_cbranch_scc1 %s"%Lhx)
    mainloop(False,True); p("s_branch %s"%Lep)
    p.label(Lhx,reset=True); mainloop(True,True)
    p.label(Lep)
    GS(2)
    p("v_readfirstlane_b32 %s, v3"%s(sFIRST))
    p("s_nop 15")
    n_,kh_=TV[0],TV[1]
    p("v_and_b32 %s, 31, v0"%v(n_)); p("v_lshrrev_b32 %s, 5, v0"%v(kh_))
    wm,wn=sT[5],sT[6]
    p("s_lshr_b32 %s, %s, 1"%(s(wm),s(sW))); p("s_and_b32 %s, %s, 1"%(s(wn),s(sW)))
    seg0=sT[7]
    p("s_lshl_b32 %s, %s, 2"%(s(seg0),s(sROW))); p("s_sub_u32 %s, 2, %s"%(s(sT[1]),s(sHALF))); p("s_lshl_b32 %s, %s, %s"%(s(sT[0]),s(wm),s(sT[1]))); p("s_add_u32 %s, %s, %s"%(s(seg0),s(seg0),s(sT[0])))
    p("s_mov_b32 %s, 0x3f800000"%s(sSC))
    p("s_cmp_eq_u32 %s, 0"%s(sKIND)); p("s_cselect_b32 %s, 0x%x, %s"%(s(sSC),f2u(CB),s(sSC)))
    p("s_cmp_eq_u32 %s, 3"%s(sKIND)); p("s_cselect_b32 %s, 0x%x, %s"%(s(sSC),f2u(CA),s(sSC)))
    p("s_mov_b32 %s, %s"%(s(sSC+1),s(sSC)))
    def pack(i,j,nreg,scale):
        n=4*i+j
        if n<15: r=16+16*n
        else:
            r=16
            for q in range(nreg): p("v_accvgpr_read_b32 %s, %s"%(v(r+q),acc(q)))
        if scale:
            for q in range(0,nreg,2): p("v_pk_mul_f32 %s, %s, %s"%(v(r+q,2),v(r+q,2),s(sSC,2)))
        for q in range(0,nreg,2): p("v_cvt_pk_bf16_f32 %s, %s, %s"%(v(r+q//2),v(r+q),v(r+q+1)))
        return r
    LA_=p.newlabel("EA"); Ldone=p.newlabel("ED"); FL=sT[8]
    p("s_cmp_ge_u32 %s, 3"%s(sKIND)); p("s_cbranch_scc1 %s"%LA_)
    p("s_lshl_b32 %s, %s, 1"%(s(sT[0]),s(sN))); p("s_add_u32 %s, %s, %s"%(s(sT[0]),s(sT[0]),s(wn)))
    p("s_cmp_eq_u32 %s, 2"%s(sKIND))
    p("s_cselect_b32 %s, %d, %d"%(s(sT[1]),QX_H,KV_H)); p("s_cselect_b32 %s, 8192, 16384"%s(sT[2])); p("s_cselect_b32 %s, 0x%x, 0x%x"%(s(sT[3]),WS_QX,WS_KV))
    p("s_cselect_b32 %s, %d, %d"%(s(FL),F_Q,F_KV)); p("s_add_u32 %s, %s, %s"%(s(FL),s(FL),s(sM)))
    p("s_mul_i32 %s, %s, %s"%(s(sT[0]),s(sT[0]),s(sT[1]))); p("s_mul_i32 %s, %s, %s"%(s(sT[1]),s(seg0),s(sT[2])))
    p("s_add_u32 %s, %s, %s"%(s(sT[0]),s(sT[0]),s(sT[1]))); p("s_add_u32 %s, %s, %s"%(s(sT[0]),s(sT[0]),s(sT[3])))
    p("s_cmp_eq_u32 %s, 1"%s(sKIND))
    p("s_cselect_b32 %s, 8192, 0"%s(sT[9]))
    p("s_cselect_b32 %s, 10, 12"%s(sT[1])); p("s_cselect_b32 %s, 2048, 1024"%s(sT[3]))
    p("s_add_u32 %s, %s, %s"%(s(sT[0]),s(sT[0]),s(sT[9])))
    add64s(p,sDST,sWS,sT[0])
    p("v_lshrrev_b32 %s, 4, %s"%(v(TV[2]),v(n_))); p("v_lshlrev_b32 %s, %s, %s"%(v(TV[2]),s(sT[1]),v(TV[2])))
    p("v_and_b32 %s, 15, v0"%v(TV[3])); p("v_lshl_add_u32 %s, %s, 4, %s"%(v(TV[3]),v(kh_),v(TV[3]))); p("v_lshl_add_u32 %s, %s, 4, %s"%(v(TV[2]),v(TV[3]),v(TV[2])))
    for j in range(1,4):
        p("v_add_u32 %s, %s, %s"%(v(TV[2]+j),s(sT[3]),v(TV[2]+j-1)))
    for i in range(4):
        for j in range(4):
            r=pack(i,j,16,True)
            for half in range(2): p("global_store_dwordx4 %s, %s, %s offset:%d%s"%(v(TV[2]+j),v(r+4*half,4),s(sDST,2),512*half,st),"st")
        if i<3: add64s(p,sDST,sDST,sT[2])
        p("s_waitcnt vmcnt(16)")
        if i==1: p("s_cmp_lg_u32 %s, 0"%s(sHALF)); p("s_cbranch_scc1 %s"%Ldone)
    p("s_branch %s"%Ldone)
    p.label(LA_,reset=True); p.vm=[]
    LAV=p.newlabel("EV")
    p("s_and_b32 %s, %s, 3"%(s(sT[0]),s(sN))); p("s_add_u32 %s, %s, %d"%(s(FL),s(sT[0]),F_A))
    p("s_lshl_b32 %s, %s, 3"%(s(sT[0]),s(sT[0]))); p("s_lshl_b32 %s, %s, 2"%(s(sT[1]),s(wn))); p("s_add_u32 %s, %s, %s"%(s(sT[9]),s(sT[0]),s(sT[1])))
    p("s_cmp_eq_u32 %s, 5"%s(sKIND)); p("s_cbranch_scc1 %s"%LAV)
    p("s_cmp_eq_u32 %s, 3"%s(sKIND))
    p("s_cselect_b32 %s, %d, %d"%(s(sT[1]),AQ_H,AKV_H)); p("s_cselect_b32 %s, 0x%x, 0x%x"%(s(sT[3]),WS_AQ,WS_AKV))
    p("s_cselect_b32 %s, 1152, 1024"%s(sT[2])); p("s_cselect_b32 %s, 1152, 128"%s(sT[10])); p("s_cselect_b32 %s, 1024, %d"%(s(sT[11]),AK1))
    p("s_mul_i32 %s, %s, %s"%(s(sT[0]),s(sT[9]),s(sT[1]))); p("s_add_u32 %s, %s, %s"%(s(sT[0]),s(sT[0]),s(sT[3]))); add64s(p,sDST,sWS,sT[0])
    p("s_mul_i32 %s, %s, %s"%(s(sT[12]),s(seg0),s(sT[2]))); p("s_mul_i32 %s, %s, %s"%(s(sT[13]),s(seg0),s(sT[10]))); p("s_add_u32 %s, %s, %s"%(s(sT[13]),s(sT[13]),s(sT[11])))
    p("v_lshlrev_b32 %s, 4, v0"%v(TV[2])); p("v_add_u32 %s, %s, %s"%(v(TV[2]),s(sT[12]),v(TV[2])))
    p("v_lshlrev_b32 %s, 2, %s"%(v(TV[3]),v(n_))); p("v_add_u32 %s, %s, %s"%(v(TV[3]),s(sT[13]),v(TV[3])))
    for j in range(4):
        p("v_mov_b32 %s, %s"%(v(TV[4]),v(TV[2]))); p("v_mov_b32 %s, %s"%(v(TV[5]),v(TV[3])))
        for i in range(4):
            r=pack(i,j,10,True)
            p("global_store_dwordx4 %s, %s, %s%s"%(v(TV[4]),v(r,4),s(sDST,2),st),"st")
            p("s_mov_b64 exec, 0xffffffff"); p("global_store_dword %s, %s, %s%s"%(v(TV[5]),v(r+4),s(sDST,2),st),"st"); p("s_mov_b64 exec, -1")
            if i<3: p("v_add_u32 %s, %s, %s"%(v(TV[4]),s(sT[2]),v(TV[4]))); p("v_add_u32 %s, %s, %s"%(v(TV[5]),s(sT[10]),v(TV[5])))
        if j<3: add64s(p,sDST,sDST,sT[1])
    p("s_branch %s"%Ldone)
    p.label(LAV,reset=True); p.vm=[]
    p("s_mul_i32 %s, %s, %d"%(s(sT[0]),s(sT[9]),AKV_H)); p("s_mul_i32 %s, %s, %d"%(s(sT[1]),s(seg0),AVT)); p("s_add_u32 %s, %s, %s"%(s(sT[0]),s(sT[0]),s(sT[1])))
    p("s_add_u32 %s, %s, 0x%x"%(s(sT[0]),s(sT[0]),WS_AKV+AV0)); add64s(p,sDST,sWS,sT[0])
    p("v_mul_u32_u24 %s, 304, %s"%(v(TV[2]),v(kh_))); p("v_lshl_add_u32 %s, %s, 4, %s"%(v(TV[2]),v(n_),v(TV[2])))
    p("v_add_u32 %s, %d, %s"%(v(TV[3]),2*AVT,v(TV[2])))
    p("s_mov_b32 %s, 0x3ffff"%s(sT[2])); p("s_mov_b32 %s, 0x3ffff"%s(sT[3]))
    for j in range(4):
        for i in range(4):
            r=pack(i,j,16,False)
            p("s_mov_b64 exec, %s"%s(sT[2],2))
            for ks in range(2): p("global_store_dwordx4 %s, %s, %s offset:%d%s"%(v(TV[2+i//2]),v(r+4*ks,4),s(sDST,2),(i%2)*AVT+608*ks,st),"st")
            p("s_mov_b64 exec, -1")
        if j<3: add64(p,sDST,sDST,AKV_H)
        p("s_waitcnt vmcnt(16)")
    p.label(Ldone,reset=True); p.vm=[]
    GS(3); p("s_waitcnt vmcnt(0)"); GS(4); GS(-1)
    if "first_signal_hook" in cfg:
        Lh=p.newlabel("GH"); p("s_cmp_ge_u32 %s, 4"%s(sFIRST)); p("s_cbranch_scc1 %s"%Lh)
        cfg["first_signal_hook"](p); p("s_mov_b32 %s, 4"%s(sFIRST)); p.label(Lh,reset=True)
    p("s_sub_u32 %s, 2, %s"%(s(sT[9]),s(sHALF)))
    signal(p,FL,st,s(sT[9]))
    p("s_branch %s"%Ltop)
```

```python
S=2048; D=576; H=32; DH=128; M=8; SEG=32; NSEG=64
WS_AG   = 0x0000000
WS_FLAG = 0x0020000
WS_RS   = 0x0100000
WS_STR  = 0x0200000
WS_M0   = 0x0300000
WS_MEMH = 0x0500000
WS_KVM  = 0x0602000
WS_KV   = 0x1600000
WS_QX   = 0x3800000
WS_AQ   = 0x4800000
WS_AKV  = 0x4c00000
WS_OA   = 0x5200000
WS_END_CHAIN = 0x6800000
KV_H=65*16384; KV_S=16384; KVM_H=65*8192; KVM_S=8192; QX_H=64*8192
AQ_H=64*1152; AKV_H=151552; AK1=65536; AV0=73728; AVT=1216
OA_M=292*1024
F_KV=0
F_Q=8
F_A=16
F_OA=32
F_KM=98
F_OB=162
NFLAG=226
STAGES = [(8,0,1),(2,3,4),(5,6,7)]
def ocol(w,tau,c): return 64*tau+16*w+c
def dcol(kap,gA,i,t,b):
    sg,u = divmod(kap,3)
    c_,a_,b_ = STAGES[sg]
    if u==0: return ocol(gA,c_,8*t+2*i+b)
    return ocol(gA,(b_ if b else a_),8*t+4*(u-1)+i)
assert sorted(dcol(k,g,i,t,b) for k in range(9) for g in range(4) for i in range(4) for t in range(2) for b in range(2))==list(range(576))
```

```python
import sys, json; sys.path.insert(0,"gen")
from asmlib import kernel_head, kernel_desc, build
from prog import *
from layout import *
import chain, roles, gemm, attn
NAME="gated_mix__softmax_full_mha__memory_aug_recurrent_mem_tr__prompt"
NT5=96; NTEAM=7
def poll_word(p,base_pair,off,count,abort,vt,sT0,sB,sleep=4):
    L=p.newlabel("PW"); G=p.newlabel("PG")
    p("v_mov_b32 %s, 0x%x"%(v(vt),off))
    p.label(L)
    p("global_load_dword %s, %s, %s sc1"%(v(vt+1),v(vt),s(base_pair,2))); p("s_waitcnt vmcnt(0)")
    p("v_readfirstlane_b32 %s, %s"%(s(sT0),v(vt+1)))
    p("s_cmp_ge_u32 %s, %d"%(s(sT0),count)); p("s_cbranch_scc1 %s"%G)
    p("s_sub_u32 %s, %s, 1"%(s(sB),s(sB))); p("s_cbranch_scc1 %s"%abort)
    p("s_sleep %d"%sleep); p("s_branch %s"%L)
    p.label(G)
def gen(out,ccfg=None,force_slow=False,diag=False):
    p=Prog(); name=NAME+"_kernel"
    hdr=[l for l in open("cdna_kernels/%s.s.ref"%NAME).read().split("\n") if l.startswith(";") and "@launch" not in l and "Override" not in l and "grid=ceil" not in l]
    for l in hdr: p.raw(l)
    p.raw("; @launch grid=(256,1,1) block=(256,1,1) lds=163840")
    p.raw('.amdgcn_target "amdgcn-amd-amdhsa--gfx950"'); p.raw(kernel_head(name))
    roles.role_select(p,"CHAIN","WORKER","EXIT0",force_slow=force_slow)
    p.label("EXIT0",reset=True); p("s_endpgm")
    from gemm import sIDX,sW,sWS,sDBG,sBUD,sWOA,sGW,sOUT,sT
    p.label("WORKER",reset=True); p.vm=[]; p.lg=[]
    p("s_load_dwordx4 s[20:23], s[0:1], 0"); p("s_load_dwordx2 %s, s[0:1], 16"%s(sWOA,2)); p("s_load_dwordx4 s[36:39], s[0:1], 80")
    p("s_mov_b32 %s, 0x8000"%s(sBUD)); p("s_waitcnt lgkmcnt(0)")
    p("s_mov_b64 %s, s[36:37]"%s(sGW,2)); p("s_mov_b64 %s, s[38:39]"%s(sOUT,2))
    if diag: p("s_memrealtime s[90:91]"); p("s_waitcnt lgkmcnt(0)")
    Lni=p.newlabel("NI")
    p("s_cmp_lg_u32 %s, 0"%s(sIDX)); p("s_cbranch_scc1 %s"%Lni)
    p("v_lshlrev_b32 v2, 7, v0"); p("v_add_u32 v2, 0x%x, v2"%WS_FLAG); p("v_mov_b32 v3, 0")
    p("global_store_dword v2, v3, %s sc1"%s(sWS,2))
    p("s_waitcnt vmcnt(0)"); p("s_barrier")
    p("s_mov_b64 exec, 1"); p("v_mov_b32 v2, 12"); p("v_mov_b32 v3, 1"); p("global_atomic_add v2, v3, %s"%s(sDBG,2)); p("s_mov_b64 exec, -1")
    p.label(Lni,reset=True); p.vm=[]
    p("v_and_b32 v0, 63, v0")
    from gemm import sQX,claim,DBG_R,DBG_T5,DBG_ARR
    def die_queue():
        p("s_getreg_b32 %s, hwreg(HW_REG_XCC_ID, 0, 4)"%s(sQX)); p("s_max_u32 %s, %s, 1"%(s(sQX),s(sQX))); p("s_sub_u32 %s, %s, 1"%(s(sQX),s(sQX))); p("s_min_u32 %s, %s, 6"%(s(sQX),s(sQX)))
    die_queue()
    cfg={"first_signal_hook":lambda p: poll_word(p,sDBG,12,4,"EXIT1",2,sT[1],sBUD)}
    if diag:
        p("s_mov_b32 s84, 0")
        def gs(i):
            if i>=0: p("s_memrealtime %s"%s(72+2*i,2)); p("s_waitcnt lgkmcnt(0)")
            else:
                for k in range(5): p("s_sub_u32 %s, %s, s90"%(s(72+2*k),s(72+2*k))); p("v_mov_b32 v%d, %s"%(10+k,s(72+2*k)))
                p("v_mov_b32 v15, %s"%s(gemm.sKIND))
                p("s_lshl_b32 s93, %s, 7"%s(sIDX)); p("s_add_u32 s93, s93, s84"); p("s_add_u32 s93, s93, 0x%x"%(WS_END_CHAIN+0x220000)); p("v_mov_b32 v2, s93")
                p("global_store_dwordx4 v2, v[10:13], %s"%s(sWS,2)); p("global_store_dwordx2 v2, v[14:15], %s offset:16"%s(sWS,2)); p("s_add_u32 s84, s84, 32")
        cfg["gstamp"]=gs
    def stamp(i):
        if not diag: return
        p("s_memrealtime s[92:93]"); p("s_waitcnt lgkmcnt(0)"); p("s_sub_u32 s92, s92, s90")
        p("s_lshl_b32 s93, %s, 4"%s(sIDX)); p("s_add_u32 s93, s93, 0x%x"%(WS_END_CHAIN+0x200000+4*i)); p("v_mov_b32 v2, s93"); p("v_mov_b32 v3, s92")
        p("global_store_dword v2, v3, %s"%s(sWS,2)); p("s_waitcnt vmcnt(0)")
    gemm.gemm_tasks(p,cfg,224,"W1","EXIT1")
    p.label("W1",reset=True); p.vm=[]; p.lg=[]; stamp(0)
    p("s_cmp_ge_u32 %s, 4"%s(gemm.sFIRST)); p("s_cbranch_scc1 W1B")
    cfg["first_signal_hook"](p)
    p.label("W1B",reset=True)
    attn.attn_a(p,{},"W2","EXIT1")
    p.label("W2",reset=True); p.vm=[]; p.lg=[]; stamp(1)
    die_queue()
    p("s_lshl_b32 s82, %s, 2"%s(sQX)); p("s_add_u32 s82, s82, %d"%DBG_R); claim(p,82,81)
    p("s_mov_b32 s82, %d"%DBG_ARR); claim(p,82,83)
    p("s_mov_b32 s80, %s"%s(sQX))
    p("s_cmp_lt_u32 s81, 18"); p("s_cbranch_scc1 W6")
    p("s_mov_b32 s82, %d"%DBG_T5); claim(p,82,80)
    p("s_cmp_lt_u32 s80, %d"%NT5); p("s_cbranch_scc1 W5")
    poll_word(p,sDBG,DBG_ARR,224,"EXIT1",2,sT[1],sBUD,sleep=32)
    p("s_mov_b32 s80, 0")
    p.label("WS",reset=True)
    p("s_lshl_b32 s82, s80, 2"); p("s_add_u32 s82, s82, %d"%DBG_R); claim(p,82,81)
    p("s_cmp_lt_u32 s81, 18"); p("s_cbranch_scc1 W6")
    p("s_add_u32 s80, s80, 1"); p("s_cmp_lt_u32 s80, 7"); p("s_cbranch_scc1 WS")
    p("s_branch EXIT1")
    p.label("W6",reset=True); p.vm=[]; p.lg=[]
    if diag: p("s_mul_i32 %s, s80, 18"%s(sIDX)); p("s_add_u32 %s, %s, s81"%(s(sIDX),s(sIDX)))
    attn.final_proj(p,{},(80,81),NTEAM,"W3","EXIT1")
    p.label("W5",reset=True); p.vm=[]; p.lg=[]
    if diag: p("s_add_u32 %s, s80, 126"%s(sIDX))
    attn.attn_b(p,{},80,NT5,"W3","EXIT1")
    p.label("W3",reset=True); p.vm=[]; p.lg=[]; stamp(2)
    p.label("EXIT1",reset=True); p("s_endpgm")
    from chain import sT0,sFKM,XD,PM,ZERO,sSTAMP,sSTP,sCA,sCR,add64,add64s
    sB=chain.sBUD
    p.label("CHAIN",reset=True); p.vm=[]; p.lg=[]
    def poll_flags(p,first,n,count):
        L=p.newlabel("PF"); G=p.newlabel("PH")
        p("v_lshrrev_b32 %s, 4, v0"%v(XD)); p("v_min_u32 %s, %d, %s"%(v(XD),n-1,v(XD))); p("v_lshlrev_b32 %s, 7, %s"%(v(XD),v(XD))); p("v_add_u32 %s, 0x%x, %s"%(v(XD),WS_FLAG+128*first,v(XD)))
        p.label(L)
        p("global_load_dword %s, %s, %s sc1"%(v(XD+1),v(XD),s(sWS,2))); p("s_waitcnt vmcnt(0)")
        p("v_cmp_gt_u32 vcc, %d, %s"%(count,v(XD+1))); p("s_cbranch_vccz %s"%G)
        p("s_sub_u32 %s, %s, 1"%(s(sB),s(sB))); p("s_cbranch_scc1 EXIT2")
        p("s_sleep 2"); p("s_branch %s"%L)
        p.label(G)
    def hook_first(p):
        if diag: p("s_memrealtime s[86:87]"); p("s_waitcnt lgkmcnt(0)"); p("s_sub_u32 s86, s86, s88")
        poll_flags(p,F_KV,3,64)
    def hook_late(p):
        p("s_waitcnt lgkmcnt(0)")
        if diag: p("s_memrealtime s[86:87]"); p("s_waitcnt lgkmcnt(0)"); p("s_sub_u32 s86, s86, s88")
        poll_flags(p,F_KV+3,5,64)
    cfg=dict(abort="EXIT2",done="DONE",pub_mod=" sc1",signal=1,next0=18,init_need=4,hook_first_kv=hook_first,hook_late=hook_late,budget=1<<18,
             entries={(sl,w):"CE%d%d"%(sl,w) for sl in range(2) for w in range(4)},
             agdepth=6,g0=5,dg=[0,36,72],da=[30,60],dlate=4,follow=0,ins=[-1,-1,-1],two=[1,0,0],str0=12,strs=2,a1=6,qgens={"0":2,"1":1,"3":2},joint=1,vfy=3,dv=16,pv=20)
    cfg.update(ccfg or {})
    if diag:
        cfg["endstamp"]=1
        p("s_memrealtime s[88:89]"); p("s_waitcnt lgkmcnt(0)")
    chain.prologue(p,cfg)
    p.label("EXIT2",reset=True); p("s_endpgm")
    p.label("DONE",reset=True); p.vm=[]; p.lg=[]
    if diag:
        p("v_mov_b32 v16, %s"%s(sCA)); p("v_mov_b32 v17, %s"%s(sCR)); p("v_mov_b32 v18, %s"%s(sB)); p("v_mov_b32 v19, 0")
        p("s_lshl_b32 s93, s18, 2"); p("s_add_u32 s93, s93, s19"); p("s_lshl_b32 s93, s93, 4"); p("s_add_u32 s93, s93, 0x%x"%(WS_END_CHAIN+0x218000)); p("v_mov_b32 v20, s93")
        p("global_store_dwordx4 v20, v[16:19], %s"%s(sWS,2))
    p("s_cmp_lg_u32 %s, 3"%s(sW)); p("s_cbranch_scc1 EXIT2")
    p("s_waitcnt vmcnt(0)"); chain.sig(p,1); p("s_mov_b64 exec, 1")
    if diag:
        p("s_memtime s[58:59]"); p("s_memrealtime s[92:93]"); p("s_waitcnt lgkmcnt(0)")
        p("s_sub_u32 s58, s58, s94"); p("s_sub_u32 s92, s92, s88"); p("s_sub_u32 s90, s90, s88")
        p("v_mov_b32 v16, s58"); p("v_mov_b32 v17, s92"); p("v_mov_b32 v18, s90"); p("v_mov_b32 v19, s86")
        p("s_lshl_b32 s93, s18, 4"); p("s_add_u32 s93, s93, 0x%x"%(WS_END_CHAIN+0x210000)); p("v_mov_b32 v20, s93")
        p("global_store_dwordx4 v20, v[16:19], %s"%s(sWS,2))
    p("s_endpgm")
    chain.loops(p,cfg)
    p.raw(kernel_desc(name,vgpr=512,sgpr=100,accum=256))
    build(p.text(),name,14,out)
    print("nops",p.nops,"lines",len(p.items),"bytes",len(p.text()))
if __name__=="__main__":
    if len(sys.argv)>1:
        for i,c in enumerate(json.loads(sys.argv[1])): gen("g%d"%i,c,diag=True)
    else:
        gen("full")
        import shutil; shutil.copy("full.s","cdna_kernels/%s.s"%NAME)
```
